```python
import torch

def _softmax(x, axis=-1):
    return torch.softmax(x, dim=axis)
def _gelu(x):
    return torch.nn.functional.gelu(x, approximate="tanh")
def _silu(x):
    return torch.nn.functional.silu(x)
def _sigmoid(x):
    return torch.sigmoid(x)
def _layernorm(x, axis=-1, eps=1e-5):
    m = x.mean(dim=axis, keepdim=True)
    v = x.var(dim=axis, keepdim=True, unbiased=False)
    return (x - m) / torch.sqrt(v + eps)
def _scatter_add(tgt, idx, src, axis=0):
    return tgt.clone().index_add_(axis, idx, src)
def _segment_sum(src, seg, n):
    out = torch.zeros((n,) + src.shape[1:], dtype=src.dtype)
    return out.index_add_(0, seg, src)
def _pad(x, pw):
    flat = tuple(v for pair in reversed(pw) for v in pair)
    return torch.nn.functional.pad(x, flat)

kernel_name = 'parallel_sum__compressed_kv_cla__mixer_channel_mlp__prompt'

def setup_inputs():

    _w = (lambda a: (lambda t: t.to(torch.bfloat16) if t.is_floating_point() else t)(torch.as_tensor(a)))
    def _A_setup():
        B, H, Sq, Sk, D, M = 1, 32, 2048, 2048, 128, 640
        Dc = 4 * D
        return {
            "x": _w((lambda *s: torch.randn(*s, dtype=torch.bfloat16) * 0.05)(B, Sq, M)),
            "c_kv": _w((lambda *s: torch.randn(*s, dtype=torch.bfloat16) * 0.4)(B, Sk, Dc)),
            "w_q": _w((lambda *s: torch.randn(*s, dtype=torch.bfloat16) * 3.2)(M, H, D) * (M ** -0.5)),
            "w_uk": _w((lambda *s: torch.randn(*s, dtype=torch.bfloat16) * 3.2)(Dc, H, D) * (Dc ** -0.5)),
            "w_uv": _w((lambda *s: torch.randn(*s, dtype=torch.bfloat16) * 0.4)(Dc, H, D) * (Dc ** -0.5)),
            "w_o": _w((lambda *s: torch.randn(*s, dtype=torch.bfloat16) * 0.4)(H, D, M) * ((H * D) ** -0.5)),
        }
    _A_in = _A_setup()

    def _B_setup():
        B, S, D, F = 1, 2048, 640, 1728
        return {
            "x": _w((lambda *s: torch.randn(*s, dtype=torch.bfloat16) * 0.05)(B, S, D)),
            "w1": _w((lambda *s: torch.randn(*s, dtype=torch.bfloat16) * 0.8)(D, F) * (D ** -0.5)),
            "b1": _w((lambda *s: torch.randn(*s, dtype=torch.bfloat16) * 0.4)(F)),
            "w2": _w((lambda *s: torch.randn(*s, dtype=torch.bfloat16) * 0.05)(F, D) * (F ** -0.5)),
            "b2": _w((lambda *s: torch.randn(*s, dtype=torch.bfloat16) * 0.05)(D)),
        }
    _B_in = _B_setup()

    return {
        "A_x": _A_in["x"],
        "A_c_kv": _A_in["c_kv"],
        "A_w_q": _A_in["w_q"],
        "A_w_uk": _A_in["w_uk"],
        "A_w_uv": _A_in["w_uv"],
        "A_w_o": _A_in["w_o"],
        "B_x": _B_in["x"],
        "B_w1": _B_in["w1"],
        "B_b1": _B_in["b1"],
        "B_w2": _B_in["w2"],
        "B_b2": _B_in["b2"],
    }

def reference(A_x, A_c_kv, A_w_q, A_w_uk, A_w_uv, A_w_o, B_x, B_w1, B_b1, B_w2, B_b2):
    def _A_ref(x, c_kv, w_q, w_uk, w_uv, w_o):
        B, Sq, M = x.shape[0], x.shape[1], x.shape[2]
        Sk = c_kv.shape[1]
        H, D = w_q.shape[1], w_q.shape[2]
        q = torch.einsum("bqm,mhd->bhqd", x, w_q)
        k = torch.einsum("bkc,chd->bhkd", c_kv, w_uk)
        v = torch.einsum("bkc,chd->bhkd", c_kv, w_uv)
        scores = torch.einsum("bhqd,bhkd->bhqk", q, k) * (D ** -0.5)
        off = Sk - Sq
        qi = torch.arange(Sq)[:, None]
        kj = torch.arange(Sk)[None, :]
        cmask = kj <= (qi + off)
        scores = torch.where(cmask[None, None], scores, -1e9)
        p = _softmax(scores, axis=-1)
        ctx = torch.einsum("bhqk,bhkd->bhqd", p, v)
        return torch.einsum("bhqd,hdm->bqm", ctx, w_o)

    def _B_ref(x, w1, b1, w2, b2):
        y = _layernorm(x, axis=-1)
        h = _gelu(torch.einsum("bsd,df->bsf", y, w1) + b1)
        return torch.einsum("bsf,fd->bsd", h, w2) + b2

    x = A_x
    xn = _layernorm(x, axis=-1)
    return x + _A_ref(xn, A_c_kv, A_w_q, A_w_uk, A_w_uv, A_w_o) + _B_ref(xn, B_w1, B_b1, B_w2, B_b2)
```

```python
import re

REG_RE = re.compile(r"^(-|abs\()?([vas])(\d+)\)?$")
RNG_RE = re.compile(r"^(-)?([vas])\[(\d+):(\d+)\]$")

def regs_of(op):
    op = op.strip()
    m = REG_RE.match(op)
    if m: return [m.group(2) + m.group(3)]
    m = RNG_RE.match(op)
    if m: return [m.group(2) + str(i) for i in range(int(m.group(3)), int(m.group(4)) + 1)]
    if op == "vcc": return ["vcc"]
    if op == "exec": return ["exec"]
    if op == "m0": return ["m0"]
    return []

TRANS = ("v_exp_f32", "v_log_f32", "v_rcp_f32", "v_rsq_f32", "v_sqrt_f32")

class Ins:
    __slots__ = ("text", "op", "kind", "rd", "wr", "passes", "srcc", "srcab", "ws", "target", "data", "dpp", "cost", "lds")
    def __init__(self, text):
        self.text = text
        t = text.split(";")[0].strip()
        parts = t.split(None, 1)
        op = parts[0]; self.op = op
        rest = parts[1] if len(parts) > 1 else ""
        ops = []; depth = 0; cur = ""
        for ch in rest:
            if ch == "[": depth += 1
            if ch == "]": depth -= 1
            if ch == "," and depth == 0: ops.append(cur.strip()); cur = ""
            else: cur += ch
        if cur.strip(): ops.append(cur.strip())
        mods = ""
        if ops:
            last = ops[-1].split(None, 1)
            ops[-1] = last[0]
            mods = last[1] if len(last) > 1 else ""
        self.rd = []; self.wr = []; self.passes = 0; self.srcc = []; self.srcab = []; self.ws = 1
        self.target = None; self.data = []; self.dpp = False; self.cost = 4; self.lds = False
        R = lambda i: regs_of(ops[i]) if i < len(ops) else []
        if op.startswith("v_mfma"):
            self.kind = "mfma"; self.passes = 8 if "32x32" in op else 4
            self.wr = R(0); self.srcab = R(1) + R(2); self.srcc = R(3); self.rd = self.srcab + self.srcc; self.cost = 8
        elif op.startswith("v_"):
            self.kind = "trans" if op in TRANS else "valu"
            if self.kind == "trans": self.cost = 8
            self.dpp = "_dpp" in op
            if op.startswith("v_permlane"):
                self.wr = R(0) + R(1); self.rd = R(0) + R(1)
            elif op.startswith("v_cmp"):
                self.wr = R(0); self.rd = R(1) + R(2)
            else:
                self.wr = R(0); self.rd = sum((R(i) for i in range(1, len(ops))), [])
                if op.startswith(("v_fmac", "v_dot2c", "v_pk_fmac")) or self.dpp: self.rd += R(0)
                if op.startswith(("v_add_co", "v_sub_co", "v_addc_co")): self.wr += R(1)
        elif op.startswith("ds_read") or op.startswith("ds_bpermute"):
            self.kind = "dsr"; self.wr = R(0); self.rd = sum((R(i) for i in range(1, len(ops))), [])
        elif op.startswith("ds_write"):
            self.kind = "dsw"; self.rd = sum((R(i) for i in range(len(ops))), [])
        elif op.startswith("buffer_load") or op.startswith("global_load"):
            if " lds" in (" " + mods):
                self.kind = "dma"; self.rd = sum((R(i) for i in range(len(ops))), []) + ["m0"]
            else:
                self.kind = "vld"; self.wr = R(0); self.rd = sum((R(i) for i in range(1, len(ops))), [])
        elif op.startswith("buffer_store") or op.startswith("buffer_atomic"):
            self.kind = "vst"; self.rd = sum((R(i) for i in range(len(ops))), [])
            if op.endswith(("x3", "x4")): self.data = R(0)
            if op.startswith("buffer_atomic") and "sc0" in mods: self.kind = "vld"; self.wr = R(0)
        elif op in ("buffer_inv", "buffer_wbl2"):
            self.kind = "vst"
        elif op == "s_nop":
            self.kind = "nop"; self.ws = int(ops[0], 0) + 1; self.cost = 4 * self.ws
        elif op == "s_waitcnt": self.kind = "wait"
        elif op in ("s_barrier", "s_endpgm", "s_setprio", "s_sleep"): self.kind = "misc"
        elif op.startswith("s_cbranch") or op == "s_branch":
            self.kind = "br"; self.target = ops[0]
            if "vcc" in op: self.rd = ["vcc"]
        elif op == "s_call_b64":
            self.kind = "br"; self.target = ops[1]; self.wr = R(0)
        elif op == "s_setpc_b64":
            self.kind = "br"; self.rd = R(0)
        elif op.startswith("s_load") or op in ("s_memtime", "s_memrealtime"):
            self.kind = "smem"; self.wr = R(0); self.rd = R(1)
        elif op.startswith("s_cmp"):
            self.kind = "salu"; self.rd = R(0) + R(1)
        elif op.startswith("s_"):
            self.kind = "salu"; self.wr = R(0); self.rd = sum((R(i) for i in range(1, len(ops))), [])
            if "saveexec" in op: self.wr += ["exec"]
        else:
            raise ValueError("unknown instruction: " + text)

def need_ws(p, c):
    n = 0
    pv = p.kind in ("valu", "trans")
    cv = c.kind in ("valu", "trans")
    pw = set(p.wr)
    if pv:
        vw = {r for r in pw if r[0] in "va" and r != "vcc"}
        sw = {r for r in pw if r[0] == "s" or r == "vcc"}
        if c.kind == "mfma" and vw & set(c.rd): n = max(n, 2)
        if p.kind == "trans" and c.kind == "valu" and vw & set(c.rd): n = max(n, 1)
        if p.kind == "trans" and c.kind in ("vst", "dsw") and vw & set(c.rd): n = max(n, 1)
        if cv and sw & set(c.rd): n = max(n, 4 if c.op.startswith(("v_readlane", "v_writelane")) else 2)
        if c.kind in ("vld", "vst", "dma") and sw & set(c.rd): n = max(n, 5)
        if c.kind == "salu" and sw & set(c.rd): n = max(n, 1)
        if c.op.startswith(("v_readfirstlane", "v_readlane")) and vw & set(c.rd): n = max(n, 1)
        if (c.op.startswith("v_permlane") or c.dpp) and vw & set(c.rd): n = max(n, 2)
        if "_sdwa" in p.op and cv and vw & set(c.rd): n = max(n, 1)
    if p.kind == "mfma":
        big = p.passes == 8
        if c.kind == "mfma":
            if pw & set(c.srcab): n = max(n, 12 if big else 8)
            if pw & set(c.srcc) and not (p.wr == c.srcc and p.passes == c.passes): n = max(n, 10 if big else 6)
        elif c.kind in ("valu", "trans", "dsr", "dsw", "vld", "vst", "dma"):
            if pw & (set(c.rd) | set(c.wr)): n = max(n, 12 if big else 8)
            if cv and set(p.srcc) & set(c.wr): n = max(n, 7 if big else 3)
    if p.kind == "salu" and "m0" in pw and c.kind == "dma": n = max(n, 1)
    if p.kind == "vst" and p.data and set(p.data) & set(c.wr): n = max(n, 2)
    return n

class Kern:
    def __init__(self, name, vgpr=256, agpr=256, sgpr=96, grid=256, block=256, lds=0):
        self.name = name; self.vgpr = vgpr; self.agpr = agpr; self.sgpr = sgpr
        self.grid = grid; self.block = block; self.lds = lds
        self.items = []
        self.hist = []
        self.lq = []
        self.vq = []
        self.t = 0
        self._lab = 0
        self.lds_slack = 160
        self.vm_slack = 10**9
        self.nnop = 0; self.nwait = 0
    def newlab(self, p="L"):
        self._lab += 1
        return f"{p}_{self.name[:6]}_{self._lab}"
    def lab(self, s): self.items.append(("label", s))
    def c(self, s): self.items.append(("c", s))
    def _raw(self, ins):
        self.items.append(ins); self.hist.append(ins); self.t += ins.cost
        if len(self.hist) > 40: self.hist.pop(0)
    def _auto_wait(self, ins):
        touched = set(ins.rd) | set(ins.wr)
        w = []
        for q, nm, slack, mx in ((self.lq, "lgkmcnt", self.lds_slack, 15), (self.vq, "vmcnt", self.vm_slack, 63)):
            p = -1
            for idx, (rs, tt) in enumerate(q):
                if isinstance(rs, set) and rs & touched: p = idx
            if p >= 0:
                while p + 1 < len(q) and self.t - q[p + 1][1] >= slack: p += 1
                n = len(q) - p - 1
                if nm == "lgkmcnt" and any(rs == "smem" or (isinstance(rs, set) and any(r[0] == "s" for r in rs)) for rs, _ in q): n = 0; p = len(q) - 1
                n = min(n, mx)
                del q[:len(q) - n]
                w.append(f"{nm}({n})")
        if w:
            self._raw(Ins("s_waitcnt " + " ".join(w))); self.nwait += 1
    def i(self, text, tag=None):
        ins = Ins(text)
        if ins.kind == "wait":
            m = re.search(r"vmcnt\((\d+)\)", text)
            if m:
                n = int(m.group(1)); del self.vq[:max(0, len(self.vq) - n)]
            m = re.search(r"lgkmcnt\((\d+)\)", text)
            if m:
                n = int(m.group(1)); del self.lq[:max(0, len(self.lq) - n)]
            self._raw(ins); return
        if tag == "touch": ins.kind = "vst"; ins.wr = []
        self._auto_wait(ins)
        d = 0; need = 0
        for p in reversed(self.hist):
            n = need_ws(p, ins)
            if n - d > need: need = n - d
            d += p.ws
            if d >= 20: break
        if need > 0:
            self._raw(Ins(f"s_nop {need-1}")); self.nnop += 1
        self._raw(ins)
        if ins.kind in ("dsr", "smem"): self.lq.append((set(ins.wr), self.t))
        elif ins.kind == "dsw": self.lq.append(("dsw", self.t))
        elif ins.kind == "vld": self.vq.append((set(ins.wr), self.t))
        elif ins.kind in ("vst", "dma"): self.vq.append((tag or ins.kind, self.t))
    def many(self, lst):
        for x in lst:
            if isinstance(x, tuple): self.i(*x)
            else: self.i(x)
    def wait_tag(self, tag, extra=""):
        p = -1
        for idx, (rs, tt) in enumerate(self.vq):
            if rs == tag: p = idx
        if p < 0: return
        n = min(63, len(self.vq) - p - 1)
        self.i(f"s_waitcnt vmcnt({n})" + extra)
    def qstate(self):
        f = lambda q: [tuple(sorted(rs)) if isinstance(rs, set) else rs for rs, _ in q]
        return (f(self.lq), f(self.vq))
    def set_q(self, st):
        g = lambda l: [(set(x) if isinstance(x, tuple) else x, self.t) for x in l]
        self.lq = g(st[0]); self.vq = g(st[1])
    def check_edges(self):
        labs = {it[1]: k for k, it in enumerate(self.items) if isinstance(it, tuple) and it[0] == "label"}
        for k, it in enumerate(self.items):
            if isinstance(it, Ins) and it.kind == "br" and it.target in labs:
                pre = [x for x in self.items[max(0, k - 60):k + 1] if isinstance(x, Ins)][-24:]
                post = [x for x in self.items[labs[it.target]:labs[it.target] + 60] if isinstance(x, Ins)][:24]
                dpost = 0
                for c in post:
                    d = dpost
                    for p in reversed(pre):
                        n = need_ws(p, c)
                        if n > d: raise RuntimeError(f"hazard across branch to {it.target}: '{p.text}' -> '{c.text}' needs {n} has {d}")
                        d += p.ws
                    dpost += c.ws
                    if c.kind == "br" and c.op in ("s_branch", "s_setpc_b64"): break
    def text(self):
        self.check_edges()
        out = [f".p2align 8", f".globl {self.name}", f".type {self.name},@function", f"{self.name}:"]
        for it in self.items:
            if isinstance(it, Ins): out.append("    " + it.text)
            elif it[0] == "label": out.append(it[1] + ":")
            elif it[0] == "raw": out.append(it[1])
            else: out.append("    ; " + it[1])
        return "\n".join(out) + "\n"
    def desc(self):
        acc = (self.vgpr + 3) // 4 * 4
        nfv = acc + self.agpr if self.agpr else self.vgpr
        return (f".p2align 6\n.amdhsa_kernel {self.name}\n  .amdhsa_next_free_vgpr {nfv}\n  .amdhsa_next_free_sgpr {self.sgpr}\n"
                f"  .amdhsa_accum_offset {acc}\n  .amdhsa_group_segment_fixed_size 0\n  .amdhsa_kernarg_size 112\n"
                f"  .amdhsa_user_sgpr_count 2\n  .amdhsa_user_sgpr_kernarg_segment_ptr 1\n  .amdhsa_system_sgpr_workgroup_id_x 1\n"
                f".end_amdhsa_kernel\n")

def weave(k, mf, fill, slack=0):
    fill = [(f[0], n, f[1], (f[2] if len(f) > 2 else f[0] + 24)) for n, f in enumerate(fill)]
    fill.sort(key=lambda x: (x[0], x[1]))
    j = 0
    def emit(it):
        if callable(it): it()
        elif isinstance(it, tuple): k.i(*it)
        else: k.i(it)
    def cost(it):
        if callable(it): return 8
        return Ins(it[0] if isinstance(it, tuple) else it).cost
    while j < len(fill) and fill[j][0] < 0:
        emit(fill[j][2]); j += 1
    over = 0
    for g, m in enumerate(mf):
        t0 = k.t
        k.i(m)
        per = 32 if "32x32" in m else 16
        must = j - 1
        jj = j
        while jj < len(fill) and fill[jj][0] < g + 1:
            if fill[jj][3] < g + 1: must = jj
            jj += 1
        while j < jj and (j <= must or k.t - t0 + cost(fill[j][2]) <= per + slack):
            emit(fill[j][2]); j += 1
        if k.t - t0 < per: k.t = t0 + per
        else: over += k.t - t0 - per
    while j < len(fill):
        emit(fill[j][2]); j += 1
    return over

def spread(items, a, b):
    n = len(items)
    return [(a + (b - a) * i / n, it) for i, it in enumerate(items)]

def write_file(path, kernels, launches=None, header=""):
    launches = launches or kernels
    s = header
    for k in launches:
        s += f"; @launch kernel={k.name} grid=({k.grid},1,1) block=({k.block},1,1) lds={k.lds}\n"
    s += '.amdgcn_target "amdgcn-amd-amdhsa--gfx950"\n.text\n'
    for k in kernels: s += k.text()
    s += '.section .rodata,"a"\n'
    for k in kernels: s += k.desc()
    open(path, "w").write(s)
```

```python
import sys, math, struct
from fw import *

WS_KV   = 0
WS_XN   = 32 << 20
WS_ST   = 35 << 20
WS_A3   = 36 << 20
WS_W3   = 60 << 20
WS_PART = 68 << 20
WS_SIZE = 0x10000000
NKS3 = 182
def f32(x): return "0x%08x" % struct.unpack("<I", struct.pack("<f", x))[0]
QSCALE = math.log2(math.e) / math.sqrt(128.0)

ARG = dict(x=0, ckv=8, wq=16, wuk=24, wuv=32, wo=40, bx=48, w1=56, b1=64, w2=72, b2=80, out=88, dbg=96, ws=104)
SIZE = dict(x=2048*640*2, ckv=2048*512*2, wq=640*4096*2, wuk=512*4096*2, wuv=512*4096*2, wo=4096*640*2, w1=640*1728*2,
            b1=1728*2, w2=1728*640*2, b2=640*2, out=2048*640*2, dbg=256, ws=WS_SIZE)

def load_srds(k, table):
    for nm, s in table.items():
        k.i(f"s_load_dwordx2 s[{s}:{s+1}], s[0:1], {ARG[nm]}")
    for nm, s in table.items():
        k.i(f"s_mov_b32 s{s+2}, {SIZE[nm]}")
        k.i(f"s_mov_b32 s{s+3}, 0x00020000")

WS_DBG = 128 << 20
STAMP = False
def stamp(k, idx):
    if STAMP: k.i(f"s_memtime s[{64+2*idx}:{65+2*idx}]")
def stamp_flush(k, n, S_WS, sW, slot=0):
    if not STAMP: return
    k.i("s_waitcnt lgkmcnt(0)")
    k.i(f"s_lshl_b32 s62, s2, 2"); k.i(f"s_add_u32 s62, s62, s{sW}"); k.i("s_lshl_b32 s62, s62, 7"); k.i(f"s_add_u32 s62, s62, {WS_DBG + slot*(1<<20)}")
    k.i("v_mov_b32 v1, 0")
    for i in range(n):
        k.i(f"v_mov_b32 v2, s{64+2*i}")
        k.i(f"buffer_store_dword v2, v1, s[{S_WS}:{S_WS+3}], s62 offen offset:{4*i}")

def vr(b, n=4, f="v"): return f"{f}[{b}:{b+n-1}]"
def ar(b, n=4): return vr(b, n, "a")
MF16 = "v_mfma_f32_16x16x32_bf16"
MF32 = "v_mfma_f32_32x32x16_bf16"

def gen_k1(store_flags="sc1", touch=0):
    k = Kern("kvproj_kernel", lds=160*1024)
    S_CKV, S_WUK, S_WUV, S_WS, S_X, S_WO, S_W2 = 8, 12, 16, 20, 24, 28, 32
    srd = lambda s: f"s[{s}:{s+3}]"
    k.i("s_cmp_ge_u32 s2, 256"); k.i("s_cbranch_scc1 L_k1_end")
    stamp(k, 0)
    load_srds(k, dict(ckv=S_CKV, wuk=S_WUK, wuv=S_WUV, ws=S_WS, x=S_X, wo=S_WO, w2=S_W2))
    stamp(k, 12)
    sH, sRB, sW, sT0, sT1, sCb, sWb, sLC, sLW, sTile, sSc = 36, 37, 38, 39, 40, 41, 42, 43, 44, 45, 46
    k.i("v_lshrrev_b32 v1, 6, v0"); k.i(f"v_readfirstlane_b32 s{sW}, v1")
    k.i("v_and_b32 v0, 63, v0")
    k.i(f"s_and_b32 s{sT0}, s2, 7"); k.i(f"s_lshr_b32 s{sT1}, s2, 3")
    k.i(f"s_lshr_b32 s{sH}, s{sT1}, 2"); k.i(f"s_and_b32 s{sRB}, s{sT1}, 3")
    k.i(f"s_lshr_b32 s{sT1}, s{sT0}, 1"); k.i(f"s_lshl_b32 s{sT1}, s{sT1}, 3"); k.i(f"s_add_u32 s{sH}, s{sH}, s{sT1}")
    k.i(f"s_and_b32 s{sT0}, s{sT0}, 1"); k.i(f"s_lshl_b32 s{sT0}, s{sT0}, 2"); k.i(f"s_add_u32 s{sRB}, s{sRB}, s{sT0}")
    k.i(f"s_lshl_b32 s{sT0}, s{sRB}, 2"); k.i(f"s_add_u32 s{sT0}, s{sT0}, s{sW}")
    k.i(f"s_lshl_b32 s{sCb}, s{sT0}, 16")
    k.i(f"s_lshl_b32 s{sTile}, s{sT0}, 15"); k.i(f"s_lshl_b32 s{sT1}, s{sH}, 20"); k.i(f"s_add_u32 s{sTile}, s{sTile}, s{sT1}")
    k.i(f"s_lshl_b32 s{sWb}, s{sW}, 17"); k.i(f"s_lshl_b32 s{sT1}, s{sH}, 8"); k.i(f"s_add_u32 s{sWb}, s{sWb}, s{sT1}")
    k.i(f"s_lshl_b32 s{sLC}, s{sW}, 13"); k.i(f"s_lshl_b32 s{sLW}, s{sW}, 12")
    k.i(f"s_mov_b32 s{sSc}, {f32(QSCALE)}")
    vC = [2, 3, 4, 5]; vW = [6, 7, 8, 9]; vTR = list(range(10, 18)); vCR = [18, 19, 20, 21]; vSK, vSV = 22, 23
    t0, t1, t2, t3 = 24, 25, 26, 27
    k.i(f"v_lshrrev_b32 v{t0}, 3, v0")
    k.i(f"v_and_b32 v{t1}, 7, v0")
    k.i(f"v_lshrrev_b32 v{t2}, 1, v{t0}")
    k.i(f"v_xor_b32 v{t1}, v{t1}, v{t2}")
    k.i(f"v_lshlrev_b32 v{t1}, 4, v{t1}")
    k.i(f"v_lshl_add_u32 v{t1}, v{t0}, 10, v{t1}")
    k.i(f"v_xor_b32 v{t2}, 64, v{t1}")
    for gq, add in enumerate([0, 15, 6, 21]):
        k.i(f"v_add_u32 v{vC[gq]}, {add*1024}, v{t2 if gq & 1 else t1}")
    k.i(f"v_lshrrev_b32 v{t0}, 4, v0")
    k.i(f"v_bfe_u32 v{t1}, v0, 1, 3")
    k.i(f"v_xor_b32 v{t1}, v{t1}, v{t0}")
    k.i(f"v_lshlrev_b32 v{t1}, 5, v{t1}")
    k.i(f"v_and_b32 v{t2}, 1, v0"); k.i(f"v_lshl_add_u32 v{t1}, v{t2}, 4, v{t1}")
    k.i(f"v_lshl_add_u32 v{t1}, v{t0}, 13, v{t1}")
    k.i(f"v_xor_b32 v{t2}, 128, v{t1}")
    for u in range(4):
        k.i(f"v_add_u32 v{vW[u]}, {u*(4*8192-1024)}, v{t2 if u >= 2 else t1}")
    WSLOT = [0, 16384, 32768]; CSLOT = [65536, 98304, 131072]
    VT = [49152, 32768, 131072, 147456, 65536, 81920, 0, 16384]
    def dma_w(srdW, s, lds, tag):
        L = [f"s_add_u32 m0, s{sLW}, {lds}", f"s_add_u32 s{sT0}, s{sWb}, {64*s*8192}"]
        L += [(f"buffer_load_dwordx4 v{vW[u]}, {srd(srdW)}, s{sT0} offen offset:{u*1024} lds", tag) for u in range(4)]
        return L
    def dma_c(s, tag):
        L = []
        for bb in range(2):
            L += [f"s_add_u32 m0, s{sLC}, {CSLOT[s % 3] + bb*4096}", f"s_add_u32 s{sT1}, s{sCb}, {bb*32768 + s*128}"]
            L += [(f"buffer_load_dwordx4 v{vC[gq]}, {srd(S_CKV)}, s{sT1} offen offset:{gq*1024} lds", tag) for gq in range(4)]
        return L
    stamp(k, 13)
    sPC, sPW, sP = 47, 48, 49
    def touch_setup():
        k.i(f"s_lshr_b32 s{sP}, s2, 3"); k.i(f"s_lshl_b32 s{sP}, s{sP}, 2"); k.i(f"s_add_u32 s{sP}, s{sP}, s{sW}")
        k.i(f"s_lshl_b32 s{sPC}, s{sP}, 13"); k.i(f"s_lshl_b32 s{sPW}, s{sP}, 13")
        k.i(f"s_and_b32 s{sP}, s2, 1"); k.i(f"s_lshl_b32 s{sP}, s{sP}, 20"); k.i(f"s_add_u32 s{sPC}, s{sPC}, s{sP}")
        k.i(f"s_bfe_u32 s{sP}, s2, 0x20001"); k.i(f"s_lshl_b32 s{sP}, s{sP}, 11"); k.i(f"s_add_u32 s{sPW}, s{sPW}, s{sP}")
        k.i(f"v_and_b32 v28, 7, v0"); k.i(f"v_bfe_u32 v29, v0, 3, 1"); k.i(f"v_lshlrev_b32 v29, 7, v29"); k.i(f"v_lshl_add_u32 v28, v28, 10, v29")
        k.i(f"v_and_b32 v29, 15, v0"); k.i(f"v_lshlrev_b32 v29, 7, v29")
    def touch_c(p): return [(f"buffer_load_dword v30, v28, {srd(S_CKV)}, s{sPC} offen offset:{p*256}", "touch")]
    def touch_w(sr, p): return [f"s_add_u32 s{sP}, s{sPW}, {p*128*8192}", (f"buffer_load_dword v31, v29, {srd(sr)}, s{sP} offen", "touch")]
    for s in range(2):
        k.many(dma_w(S_WUK, s, WSLOT[s], f"st{s}")); k.many(dma_c(s, f"st{s}"))
        if s == 0:
            stamp(k, 14)
            if touch:
                touch_setup(); k.many(touch_c(1) + touch_w(S_WUK, 1))
                if touch == 2: k.many(touch_c(2) + touch_w(S_WUK, 2))
    k.i(f"v_bfe_u32 v{t1}, v0, 2, 2")
    k.i(f"v_lshl_add_u32 v{t2}, v{t0}, 3, v{t1}")
    k.i(f"v_lshlrev_b32 v{t2}, 8, v{t2}")
    k.i(f"v_and_b32 v{t3}, 3, v0"); k.i(f"v_lshl_add_u32 v{t2}, v{t3}, 3, v{t2}")
    k.i(f"v_and_b32 v{t3}, 1, v{t0}"); k.i(f"v_lshl_add_u32 v{t1}, v{t3}, 2, v{t1}")
    k.i(f"v_lshl_add_u32 v{t2}, v{t1}, 5, v{t2}")
    for nt in range(8):
        k.i(f"v_xor_b32 v{vTR[nt]}, {nt*32}, v{t2}")
    k.i(f"v_bfe_u32 v{t1}, v0, 1, 3"); k.i(f"v_xor_b32 v{t1}, v{t1}, v{t0}"); k.i(f"v_lshlrev_b32 v{t1}, 4, v{t1}")
    k.i(f"v_and_b32 v{t2}, 15, v0"); k.i(f"v_lshl_add_u32 v{t1}, v{t2}, 7, v{t1}")
    k.i(f"v_add_u32 v{t1}, s{sLC}, v{t1}")
    k.i(f"v_add_u32 v{vCR[0]}, {64*1024}, v{t1}"); k.i(f"v_xor_b32 v{vCR[1]}, 64, v{vCR[0]}")
    k.i(f"v_add_u32 v{vCR[2]}, {128*1024}, v{t1}"); k.i(f"v_xor_b32 v{vCR[3]}, 64, v{vCR[2]}")
    k.i(f"v_and_b32 v{t1}, 7, v0"); k.i(f"v_bfe_u32 v{t2}, v0, 3, 1"); k.i(f"v_lshl_add_u32 v{t1}, v{t2}, 4, v{t1}")
    k.i(f"v_lshrrev_b32 v{t2}, 5, v0"); k.i(f"v_lshl_add_u32 v{t1}, v{t2}, 5, v{t1}"); k.i(f"v_lshlrev_b32 v{t1}, 4, v{t1}")
    k.i(f"v_bfe_u32 v{t2}, v0, 4, 1"); k.i(f"v_lshl_add_u32 v{vSK}, v{t2}, 10, v{t1}")
    k.i(f"v_and_b32 v{t1}, 15, v0"); k.i(f"v_lshl_add_u32 v{t1}, v{t2}, 5, v{t1}"); k.i(f"v_lshlrev_b32 v{t1}, 4, v{t1}")
    k.i(f"v_lshrrev_b32 v{t2}, 5, v0"); k.i(f"v_lshl_add_u32 v{vSV}, v{t2}, 12, v{t1}")


    accK = 32; accV = [160, 32]; WF = 224; NWF = 8
    cfr = []
    mf = []; first = set(); frags = []
    def mk(dkey, d, a, b):
        c = vr(d) if dkey in first else "0"
        first.add(dkey); mf.append(f"{MF16} {vr(d)}, {a}, {b}, {c}")
    for s in range(8):
        for ks in range(2):
            for rt in range(4): cfr.append((len(mf), s, ks, rt))
            for dt in range(8):
                fi = len(frags); frags.append((len(mf), WSLOT[s % 3], ks, dt, s))
                for rt in range(4):
                    d = accK + (rt*8 + dt)*4
                    mk(("K", d), d, vr(WF + 4*(fi % NWF)), ar(((s*2+ks)*4 + rt)*4))
    vstart = [0, 0]
    for half in range(2):
        vstart[half] = len(mf)
        order = list(range(8)) if half == 0 else list(range(7, -1, -1))
        for s in order:
            for ks in range(2):
                for dt in range(4):
                    fi = len(frags); frags.append((len(mf), VT[s], ks, half*4 + dt, 8 + s if half == 0 else 99))
                    for rt in range(4):
                        d = accV[half] + (((rt >> 1)*4 + dt)*2 + (rt & 1))*4
                        mk(("V", half, d), d, ar(((s*2+ks)*4 + rt)*4), vr(WF + 4*(fi % NWF)))
    NM = len(mf)
    fill = []
    LEAD = 20
    BL = 12
    bpos = {}
    for s in range(1, 8): bpos[s] = 64*s - BL
    bpos[8] = 512 - BL
    for s in (9, 10, 11): bpos[s] = bpos[8]
    bpos[12] = 512 + 4*32 - BL
    for s in (13, 14, 15): bpos[s] = bpos[12]
    bpos[0] = -100; bpos[99] = -100
    blist = sorted(set(p for p in bpos.values() if p > 0))
    win = [0]
    prev = -1000
    for fi, (use, tile, ks, nt, st) in enumerate(frags):
        p = use - LEAD
        p = max(p, bpos[st] + 0.5)
        if fi >= NWF: p = max(p, frags[fi - NWF][0] + 3.1)
        for b in blist:
            if st < 8 and bpos[st] < b and b - 7 < p <= b + 0.4: p = b - 7
        if fi >= NWF: assert p >= frags[fi - NWF][0] + 3, (fi, p)
        p = max(p, prev + 0.5); prev = p
        assert p < use - 3, (fi, p, use)
        w = tile // 65536
        if w != win[0]:
            delta = (w - win[0]) * 65536
            for j in range(8):
                if (nt >= 4) == (j >= 4) or st < 8 or True:
                    fill.append((p - 0.01, f"v_add_u32 v{vTR[j]}, {delta & 0xffffffff}, v{vTR[j]}"))
            win[0] = w
        off = tile - w*65536 + ks*8192
        r = WF + 4*(fi % NWF)
        dl = min([use - 8] + [b - 5 for b in blist if st < 8 and bpos[st] < b])
        fill.append((p, f"ds_read_b64_tr_b16 {vr(r, 2)}, v{vTR[nt]} offset:{off}", dl))
        fill.append((p + 0.25, f"ds_read_b64_tr_b16 {vr(r+2, 2)}, v{vTR[nt]} offset:{off + 1024}", dl))
    for (use, s, ks, rt) in cfr:
        p = max(use - 10 - (24 if ks else 0) + rt*1.0, bpos[s] + 0.6 + rt*0.5)
        hi = CSLOT[s % 3] >= 131072
        off = CSLOT[s % 3] - (131072 if hi else 65536) + rt*2048
        fill.append((p, f"ds_read_b128 {ar(((s*2+ks)*4 + rt)*4)}, v{vCR[2*hi + ks]} offset:{off}", use - 6 + rt))
    def barrier(tags):
        def f():
            for t in tags: k.wait_tag(t)
            k.i("s_waitcnt lgkmcnt(0)")
            k.i("s_barrier")
        return f
    for s in range(1, 8): fill.append((bpos[s], barrier([f"st{s}"]), bpos[s]))
    fill.append((bpos[8], barrier(["v0", "v1"]), bpos[8]))
    fill.append((bpos[12], barrier(["v2", "v3"]), bpos[12]))
    for s in range(6):
        a = max(bpos[s] + 3, 0)
        fill += spread(dma_w(S_WUK, s+2, WSLOT[(s+2) % 3], f"st{s+2}") + dma_c(s+2, f"st{s+2}"), a, a + 40)
    fill += spread(dma_w(S_WUV, 0, VT[0], "v0"), 64*3 + 32, 64*3 + 44)
    fill += spread(sum((dma_w(S_WUV, t, VT[t], "v1") for t in (1, 2, 3)), []), bpos[6] + 3, bpos[6] + 43)
    fill += spread(sum((dma_w(S_WUV, t, VT[t], "v2") for t in (4, 5, 6)), []), bpos[7] + 3, bpos[7] + 43)
    fill += spread(dma_w(S_WUV, 7, VT[7], "v3"), bpos[8] + 3, bpos[8] + 20)
    if touch == 1:
        fill += spread(touch_c(2) + touch_w(S_WUK, 2), 42, 47)
        fill += spread(touch_c(3) + touch_w(S_WUK, 3), 64 + 42, 64 + 47)
        for p in range(4): fill += spread(touch_w(S_WUV, p), 64*(2+p) - 16, 64*(2+p) - 13)
    if touch == 2:
        fill += spread(touch_c(3) + touch_w(S_WUK, 3), 42, 47)
        for p in range(4): fill += spread(touch_w(S_WUV, p), 64*(2+p) - 16, 64*(2+p) - 13)
    ep = []
    for rt in range(4):
        for b in range(4):
            base = accK + (rt*8 + 2*b)*4
            for j in range(8): ep.append(f"v_mul_f32 v{base+j}, s{sSc}, v{base+j}")
            for j in range(4): ep.append(f"v_cvt_pk_bf16_f32 v{base+j}, v{base+2*j}, v{base+2*j+1}")
            ep.append(f"s_add_u32 s{sT1}, s{sTile}, {(rt >> 1)*8192 + (b >> 1)*4096}")
            ep.append(f"buffer_store_dwordx4 {vr(base)}, v{vSK}, {srd(S_WS)}, s{sT1} offen offset:{(b & 1)*2048 + (rt & 1)*128} {store_flags}")
    fill += spread(ep[:len(ep)//2], vstart[0] + 24, vstart[1] - 30)
    fill += spread(ep[len(ep)//2:], vstart[1] - 28, vstart[1] + 150)
    def v_ep(half):
        ep = []
        for bb in range(2):
            for dt in range(4):
                base = accV[half] + (bb*4 + dt)*8
                for j in range(4): ep.append(f"v_cvt_pk_bf16_f32 v{base+j}, v{base+2*j}, v{base+2*j+1}")
                if dt == 0: ep.append(f"s_add_u32 s{sT1}, s{sTile}, {16384 + bb*8192}")
                ep.append(f"buffer_store_dwordx4 {vr(base)}, v{vSV}, {srd(S_WS)}, s{sT1} offen offset:{(2*half + (dt >> 1))*1024 + (dt & 1)*256} {store_flags}")
        return ep
    fill += spread(v_ep(0), vstart[1] + 152, vstart[1] + 230)
    stamp(k, 1)
    k.wait_tag("st0"); k.i("s_barrier")
    stamp(k, 2)
    for n, p in enumerate([64, 128, 256, 384, 512, 768]): fill.append((p + 0.9, (lambda n=n: stamp(k, 3+n))))
    print('k1 over', weave(k, mf, fill))
    stamp(k, 9)
    k.many(v_ep(1))
    stamp(k, 10)
    if STAMP: k.i("s_waitcnt vmcnt(0)")
    stamp(k, 11)
    stamp_flush(k, 15, S_WS, sW)
    side_jobs_k1(k, dict(S_WS=S_WS, S_X=S_X, S_WO=S_WO, S_W2=S_W2, sW=sW), store_flags)
    k.lab("L_k1_end")
    k.i("s_endpgm")
    return k

def row_reduce32(k, v, t):
    for n in (8, 4, 2, 1):
        k.i(f"v_add_f32_dpp v{v}, v{v}, v{v} row_ror:{n} row_mask:0xf bank_mask:0xf")
    k.i(f"v_mov_b32 v{t}, v{v}")
    k.i(f"v_permlane16_swap_b32 v{v}, v{t}")
    k.i(f"v_add_f32 v{v}, v{v}, v{t}")
def round_bf16(k, v):
    k.i(f"v_cvt_pk_bf16_f32 v{v}, v{v}, v{v}")
    k.i(f"v_and_b32 v{v}, 0xffff0000, v{v}")

def ln_loads(k, S_X, sW, B, sA):
    k.i(f"s_lshl_b32 s{sA}, s2, 2"); k.i(f"s_add_u32 s{sA}, s{sA}, s{sW}")
    k.i(f"s_mul_i32 s{sA+1}, s{sA}, 2560")
    k.i(f"v_lshrrev_b32 v{B+40}, 5, v0"); k.i(f"v_and_b32 v{B+41}, 31, v0")
    k.i(f"v_mul_u32_u24 v{B+42}, 1280, v{B+40}"); k.i(f"v_lshl_add_u32 v{B+42}, v{B+41}, 3, v{B+42}")
    for j in range(5):
        k.i(f"buffer_load_dwordx2 {vr(B+2*j, 2)}, v{B+42}, s[{S_X}:{S_X+3}], s{sA+1} offen offset:{j*256}")

def ln_compute(k, S_WS, B, sA):
    X = B + 10
    D = B + 30
    sm, t, mu, rr = B+43, B+44, B+45, B+46
    def unpack():
        for j in range(10):
            k.i(f"v_lshlrev_b32 v{X+2*j}, 16, v{B+j}"); k.i(f"v_and_b32 v{X+2*j+1}, 0xffff0000, v{B+j}")
    def stats():
        k.i(f"v_pk_add_f32 {vr(D,2)}, {vr(X,2)}, {vr(X+2,2)}")
        for j in range(2, 10): k.i(f"v_pk_add_f32 {vr(D,2)}, {vr(D,2)}, {vr(X+2*j,2)}")
        k.i(f"v_add_f32 v{sm}, v{D}, v{D+1}")
        row_reduce32(k, sm, t)
        k.i(f"v_mul_f32 v{mu}, {f32(1/640)}, v{sm}")
        k.i(f"v_mov_b32 v{D}, 0"); k.i(f"v_mov_b32 v{D+1}, 0")
        for j in range(10):
            k.i(f"v_sub_f32 v{D+2}, v{X+2*j}, v{mu}"); k.i(f"v_sub_f32 v{D+3}, v{X+2*j+1}, v{mu}")
            k.i(f"v_pk_fma_f32 {vr(D,2)}, {vr(D+2,2)}, {vr(D+2,2)}, {vr(D,2)}")
        k.i(f"v_add_f32 v{sm}, v{D}, v{D+1}")
        row_reduce32(k, sm, t)
        k.i(f"v_mul_f32 v{sm}, {f32(1/640)}, v{sm}")
        round_bf16(k, sm); k.i(f"v_add_f32 v{sm}, {f32(1e-5)}, v{sm}"); round_bf16(k, sm)
        k.i(f"v_sqrt_f32 v{sm}, v{sm}"); round_bf16(k, sm)
        k.i(f"v_rcp_f32 v{rr}, v{sm}")
        round_bf16(k, mu)
    unpack(); stats()
    for j in range(10):
        k.i(f"v_sub_f32 v{D+2}, v{X+2*j}, v{mu}"); k.i(f"v_sub_f32 v{D+3}, v{X+2*j+1}, v{mu}")
        k.i(f"v_cvt_pk_bf16_f32 v{D+4}, v{D+2}, v{D+3}")
        k.i(f"v_lshlrev_b32 v{D+2}, 16, v{D+4}"); k.i(f"v_and_b32 v{D+3}, 0xffff0000, v{D+4}")
        k.i(f"v_mul_f32 v{D+2}, v{D+2}, v{rr}"); k.i(f"v_mul_f32 v{D+3}, v{D+3}, v{rr}")
        k.i(f"v_cvt_pk_bf16_f32 v{B+j}, v{D+2}, v{D+3}")
    c = B + 41
    k.i(f"v_lshrrev_b32 v{D}, 3, v{c}"); k.i(f"v_bfe_u32 v{D+1}, v{c}, 1, 2"); k.i(f"v_lshlrev_b32 v{D}, 10, v{D}")
    k.i(f"v_lshl_add_u32 v{D}, v{D+1}, 8, v{D}"); k.i(f"v_and_b32 v{D+1}, 1, v{c}"); k.i(f"v_lshl_add_u32 v{D}, v{D+1}, 3, v{D}")
    k.i(f"v_lshl_add_u32 v{D+5}, v{B+40}, 4, v{D}")
    k.i(f"s_lshr_b32 s{sA+1}, s{sA}, 3"); k.i(f"s_mul_i32 s{sA+1}, s{sA+1}, {20*1024}")
    k.i(f"s_and_b32 s{sA+2}, s{sA}, 7"); k.i(f"s_lshl_b32 s{sA+2}, s{sA+2}, 5"); k.i(f"s_add_u32 s{sA+1}, s{sA+1}, s{sA+2}")
    for j in range(5):
        k.i(f"s_add_u32 s{sA+2}, s{sA+1}, {WS_XN + j*4096}")
        k.i(f"buffer_store_dwordx2 {vr(B+2*j, 2)}, v{D+5}, s[{S_WS}:{S_WS+3}], s{sA+2} offen")
    unpack(); stats()
    k.i(f"v_mov_b32 v{rr+1}, v{mu}")
    k.i(f"v_lshlrev_b32 v{D+5}, 3, v{B+40}")
    k.i(f"s_lshl_b32 s{sA+1}, s{sA}, 4"); k.i(f"s_add_u32 s{sA+1}, s{sA+1}, {WS_ST}")
    k.i(f"buffer_store_dwordx2 {vr(rr, 2)}, v{D+5}, s[{S_WS}:{S_WS+3}], s{sA+1} offen")

def w3_job(k, S_WS, S_WO, S_W2, sW, B, sA, store_flags):
    sU, sK, sC, sO = sA, sA+1, sA+2, sA+3
    SR = sA + 4; sT = sA + 8
    vXh, vXc, vX, vL = B, B+1, B+2, B+3
    B0, B1 = B+4, B+8; X, Y = B+12, B+16; D = B+20
    t0, t1 = B+36, B+37
    k.i(f"v_and_b32 v{t0}, 15, v0"); k.i(f"v_lshrrev_b32 v{t1}, 4, v0")
    k.i(f"v_mul_u32_u24 v{vXh}, 1280, v{t0}"); k.i(f"v_lshl_add_u32 v{vXh}, v{t1}, 4, v{vXh}")
    k.i(f"v_bfe_u32 v{vXc}, v0, 3, 1"); k.i(f"v_mul_u32_u24 v{vXc}, {8*1280}, v{vXc}"); k.i(f"v_add_u32 v{vXc}, v{vXc}, v{vXh}")
    k.i(f"v_lshlrev_b32 v{vL}, 4, v0")
    k.i(f"v_lshlrev_b32 v{t1}, 3, v{t1}"); k.i(f"v_sub_u32 v{t0}, v{t0}, v{t1}")
    k.i(f"v_mov_b32 v{X}, 0x3f80"); k.i(f"v_mov_b32 v{X+1}, 0x3f800000")
    for e, BB in enumerate((B0, B1)):
        for jj in range(4):
            k.i(f"v_cmp_eq_i32 vcc, {2*jj - 16*e}, v{t0}"); k.i(f"v_cndmask_b32 v{BB+jj}, 0, v{X}, vcc")
            k.i(f"v_cmp_eq_i32 vcc, {2*jj + 1 - 16*e}, v{t0}"); k.i(f"v_cndmask_b32 v{BB+jj}, v{BB+jj}, v{X+1}, vcc")
    k.i(f"s_lshl_b32 s{sU}, s2, 2"); k.i(f"s_add_u32 s{sU}, s{sU}, s{sW}")
    k.i(f"s_mov_b32 s{SR+3}, 0x00020000")
    loop = k.newlab(); done = k.newlab()
    k.i("s_waitcnt vmcnt(0) lgkmcnt(0)")
    k.lab(loop)
    k.i(f"s_mul_hi_u32 s{sK}, s{sU}, {(2**32 + 19)//20}"); k.i(f"s_mul_i32 s{sT}, s{sK}, 20"); k.i(f"s_sub_u32 s{sC}, s{sU}, s{sT}")
    k.i(f"s_cmp_lt_u32 s{sK}, 128")
    k.i(f"s_cselect_b64 s[{SR}:{SR+1}], s[{S_WO}:{S_WO+1}], s[{S_W2}:{S_W2+1}]")
    k.i(f"s_cselect_b32 s{SR+2}, s{S_WO+2}, s{S_W2+2}")
    k.i(f"s_cselect_b64 vcc, -1, 0")
    k.i(f"s_cselect_b32 s{sT+1}, 8, 16"); k.i(f"s_mul_i32 s{sT+1}, s{sT+1}, 1280")
    k.i(f"v_cndmask_b32 v{vX}, v{vXh}, v{vXc}, vcc")
    k.i(f"s_and_b32 s{sT}, s{sK}, 127"); k.i(f"s_mul_i32 s{sO}, s{sT}, {32*1280}"); k.i(f"s_lshl_b32 s{sT}, s{sC}, 6"); k.i(f"s_add_u32 s{sO}, s{sO}, s{sT}")
    k.i(f"s_add_u32 s{sT+1}, s{sT+1}, s{sO}")
    k.i(f"buffer_load_dwordx4 {vr(X)}, v{vX}, s[{SR}:{SR+3}], s{sO} offen")
    k.i(f"buffer_load_dwordx4 {vr(Y)}, v{vX}, s[{SR}:{SR+3}], s{sT+1} offen")
    k.i(f"s_mul_hi_u32 s{sT}, s{sC}, {(2**32 + 4)//5}"); k.i(f"s_mul_i32 s{sO}, s{sT}, {NKS3*10 - 10}")
    k.i(f"s_mul_i32 s{sT}, s{sK}, 10"); k.i(f"s_add_u32 s{sO}, s{sO}, s{sT}"); k.i(f"s_lshl_b32 s{sT}, s{sC}, 1"); k.i(f"s_add_u32 s{sO}, s{sO}, s{sT}")
    k.i(f"s_lshl_b32 s{sO}, s{sO}, 10"); k.i(f"s_add_u32 s{sO}, s{sO}, {WS_W3}")
    for e, BB in enumerate((B0, B1)):
        k.i(f"{MF16} {vr(D+8*e)}, {vr(X)}, {vr(BB)}, 0")
        k.i(f"{MF16} {vr(D+8*e+4)}, {vr(Y)}, {vr(BB)}, 0")
    for e in range(2):
        for j in range(4): k.i(f"v_cvt_pk_bf16_f32 v{D+8*e+j}, v{D+8*e+2*j}, v{D+8*e+2*j+1}")
        k.i(f"buffer_store_dwordx4 {vr(D+8*e)}, v{vL}, s[{S_WS}:{S_WS+3}], s{sO} offen offset:{e*1024} {store_flags}")
    k.i(f"s_add_u32 s{sU}, s{sU}, 1024"); k.i(f"s_cmp_lt_u32 s{sU}, {NKS3*20}")
    k.i("s_nop 1")
    k.i(f"s_cbranch_scc1 {loop}")

def side_jobs_k1(k, R, store_flags):
    k.i("v_lshlrev_b32 v96, 1, v0"); k.i("v_and_b32 v96, 0x7c, v96"); k.i("v_mov_b32 v97, 0")
    k.i("s_lshl_b32 s50, s2, 7"); k.i(f"s_add_u32 s50, s50, {35*(1 << 20) + 65536}")
    k.i(f"buffer_store_dword v97, v96, s[{R['S_WS']}:{R['S_WS']+3}], s50 offen")
    ln_loads(k, R["S_X"], R["sW"], 96, 50)
    ln_compute(k, R["S_WS"], 96, 50)
    w3_job(k, R["S_WS"], R["S_WO"], R["S_W2"], R["sW"], 160, 52, store_flags)

if __name__ == "__main__":
    k1 = gen_k1()
    print("k1 instrs", sum(isinstance(x, Ins) for x in k1.items), "nops", k1.nnop, "waits", k1.nwait, "est cycles", k1.t)
    write_file("k1.s", [k1])
```

```python
from gen import *
import gen

BIG = 1e30
THRESH = 2.0**64

def gen_k2(store_flags="sc1", dbg=()):
    k = Kern("attn_kernel", lds=160*1024)
    S_WQ, S_W1, S_B1, S_WS = 8, 12, 16, 20
    srd = lambda s: f"s[{s}:{s+3}]"
    k.i("s_cmp_ge_u32 s2, 256"); k.i("s_cbranch_scc1 L_k2_end")
    stamp(k, 0)
    load_srds(k, dict(wq=S_WQ, w1=S_W1, b1=S_B1, ws=S_WS))
    sH, sI, sW, sT0, sT1, sWb, sW1b, sLW, sLW1, sXa, sXb, sHb, sT, sEnd, sQ0, sQ1, sThr, sHc, sRa, sRb, sT2, sKv, sNB = range(24, 47)
    sRet = 48
    sA, sB = 50, 51
    k.i("v_lshrrev_b32 v1, 6, v0"); k.i(f"v_readfirstlane_b32 s{sW}, v1")
    k.i("v_and_b32 v0, 63, v0")
    k.i(f"s_and_b32 s{sT0}, s2, 7"); k.i(f"s_lshr_b32 s{sT1}, s2, 3")
    k.i(f"s_lshr_b32 s{sH}, s{sT1}, 3"); k.i(f"s_lshl_b32 s{sT0}, s{sT0}, 2"); k.i(f"s_add_u32 s{sH}, s{sH}, s{sT0}")
    k.i(f"s_and_b32 s{sI}, s{sT1}, 7")
    k.i(f"s_min_u32 s{sHc}, s{sH}, 26")
    k.i(f"s_lshl_b32 s{sWb}, s{sW}, 17"); k.i(f"s_lshl_b32 s{sT1}, s{sH}, 8"); k.i(f"s_add_u32 s{sWb}, s{sWb}, s{sT1}")
    k.i(f"s_mul_i32 s{sW1b}, s{sW}, {16*3456}"); k.i(f"s_lshl_b32 s{sT1}, s{sHc}, 7"); k.i(f"s_add_u32 s{sW1b}, s{sW1b}, s{sT1}")
    k.i(f"s_lshl_b32 s{sLW}, s{sW}, 12"); k.i(f"s_lshl_b32 s{sLW1}, s{sW}, 11")
    k.i(f"s_lshl_b32 s{sQ0}, s{sI}, 2"); k.i(f"s_add_u32 s{sQ0}, s{sQ0}, s{sW}")
    k.i(f"s_sub_u32 s{sT0}, 15, s{sI}"); k.i(f"s_lshl_b32 s{sQ1}, s{sT0}, 2"); k.i(f"s_add_u32 s{sQ1}, s{sQ1}, s{sW}")
    k.i(f"s_lshl_b32 s{sEnd}, s{sT0}, 1")
    k.i(f"s_mul_i32 s{sXa}, s{sQ0}, {2*20*1024}"); k.i(f"s_add_u32 s{sXa}, s{sXa}, {WS_XN}")
    k.i(f"s_mul_i32 s{sXb}, s{sQ1}, {2*20*1024}"); k.i(f"s_add_u32 s{sXb}, s{sXb}, {WS_XN}")
    k.i(f"s_lshl_b32 s{sHb}, s{sH}, 20"); k.i(f"s_add_u32 s{sHb}, s{sHb}, s{sLW}")
    k.i(f"s_mov_b32 s{sThr}, {f32(THRESH)}"); k.i(f"s_mov_b32 s{sNB}, {f32(-BIG)}")
    vW = [2, 3, 4, 5]; vW1 = [6, 7]; vTR = list(range(8, 16)); vT1 = [16, 17, 18, 19]; vT1w = 20; vL16, vL16b = 21, 22
    vK, vV, vCS, vOnes = 23, 24, 25, 26
    t0, t1, t2, t3 = 28, 29, 30, 31
    k.i(f"v_lshlrev_b32 v{vL16}, 4, v0"); k.i(f"v_add_u32 v{vL16b}, {20*1024}, v{vL16}")
    k.i(f"v_lshrrev_b32 v{t0}, 4, v0")
    k.i(f"v_bfe_u32 v{t1}, v0, 1, 3"); k.i(f"v_xor_b32 v{t1}, v{t1}, v{t0}"); k.i(f"v_lshlrev_b32 v{t1}, 5, v{t1}")
    k.i(f"v_and_b32 v{t2}, 1, v0"); k.i(f"v_lshl_add_u32 v{t1}, v{t2}, 4, v{t1}")
    k.i(f"v_lshl_add_u32 v{t1}, v{t0}, 13, v{t1}"); k.i(f"v_xor_b32 v{t2}, 128, v{t1}")
    for u in range(4): k.i(f"v_add_u32 v{vW[u]}, {u*(4*8192-1024)}, v{t2 if u >= 2 else t1}")
    k.i(f"v_bfe_u32 v{t1}, v0, 1, 2"); k.i(f"v_bfe_u32 v{t2}, v0, 4, 1"); k.i(f"v_xor_b32 v{t1}, v{t1}, v{t2}"); k.i(f"v_lshlrev_b32 v{t1}, 5, v{t1}")
    k.i(f"v_and_b32 v{t2}, 1, v0"); k.i(f"v_lshl_add_u32 v{t1}, v{t2}, 4, v{t1}")
    k.i(f"v_lshrrev_b32 v{t2}, 3, v0"); k.i(f"v_mul_u32_u24 v{t2}, 3456, v{t2}")
    k.i(f"v_add_u32 v{vW1[0]}, v{t1}, v{t2}")
    k.i(f"v_xor_b32 v{t1}, 64, v{t1}"); k.i(f"v_add_u32 v{t1}, v{t1}, v{t2}"); k.i(f"v_add_u32 v{vW1[1]}, {8*3456-1024}, v{t1}")

    WQS = [0, 16384, 32768]; W1S = [98304, 98304+8192, 98304+16384]; SCR = 147456
    KSL = lambda t: 65536 + (t & 3)*16384
    VSL = lambda t: (3 - (t & 3))*16384
    def dma_stage(s):
        tag = f"st{s}"
        L = [f"s_add_u32 m0, s{sLW}, {WQS[s % 3]}", f"s_add_u32 s{sT0}, s{sWb}, {64*s*8192}"]
        L += [(f"buffer_load_dwordx4 v{vW[u]}, {srd(S_WQ)}, s{sT0} offen offset:{u*1024} lds", tag) for u in range(4)]
        L += [f"s_add_u32 m0, s{sLW1}, {W1S[s % 3]}", f"s_add_u32 s{sT0}, s{sW1b}, {64*s*3456}"]
        L += [(f"buffer_load_dwordx4 v{vW1[u]}, {srd(S_W1)}, s{sT0} offen offset:{u*1024} lds", tag) for u in range(2)]
        return L
    XF = lambda s, ks, qt: 128 + (((s & 1)*2 + ks)*4 + qt)*4
    def x_loads(s, ks):
        L = []
        for half, sx in enumerate((sXa, sXb)):
            off = (2*s + ks)*1024
            L.append(f"s_add_u32 s{sT1}, s{sx}, {off}")
            L.append(f"buffer_load_dwordx4 {ar(XF(s, ks, 2*half))}, v{vL16}, {srd(S_WS)}, s{sT1} offen")
            L.append(f"buffer_load_dwordx4 {ar(XF(s, ks, 2*half+1))}, v{vL16b}, {srd(S_WS)}, s{sT1} offen")
        return L
    def dma_tile_const(lds, goff, tag):
        L = [f"s_add_u32 m0, s{sLW}, {lds}", f"s_add_u32 s{sT0}, s{sHb}, {goff}"]
        L += [(f"buffer_load_dwordx4 v{vL16}, {srd(S_WS)}, s{sT0} offen offset:{u*1024} lds", tag) for u in range(4)]
        return L
    k.many(dma_stage(0)); k.many(x_loads(0, 0)); k.many(x_loads(0, 1))
    k.many(dma_stage(1)); k.many(x_loads(1, 0)); k.many(x_loads(1, 1))
    k.i(f"v_bfe_u32 v{t1}, v0, 2, 2")
    k.i(f"v_lshl_add_u32 v{t2}, v{t0}, 3, v{t1}")
    k.i(f"v_and_b32 v{t3}, 3, v0"); k.i(f"v_lshlrev_b32 v{t3}, 3, v{t3}")
    k.i(f"v_lshl_add_u32 v{vTR[0]}, v{t2}, 8, v{t3}"); k.i(f"v_lshl_add_u32 v{vT1[0]}, v{t2}, 7, v{t3}")
    k.i(f"v_and_b32 v{t3}, 1, v{t0}"); k.i(f"v_lshl_add_u32 v{t2}, v{t3}, 2, v{t1}")
    k.i(f"v_lshl_add_u32 v{vTR[0]}, v{t2}, 5, v{vTR[0]}")
    for nt in range(1, 8): k.i(f"v_xor_b32 v{vTR[nt]}, {nt*32}, v{vTR[0]}")
    k.i(f"v_lshrrev_b32 v{t2}, 1, v{t2}")
    k.i(f"v_lshl_add_u32 v{vT1[0]}, v{t2}, 5, v{vT1[0]}"); k.i(f"v_add_u32 v{vT1[0]}, {W1S[0]}, v{vT1[0]}")
    for ft in range(1, 4): k.i(f"v_xor_b32 v{vT1[ft]}, {ft*32}, v{vT1[0]}")
    k.i(f"s_lshl_b32 s{sT1}, s{sW}, 5"); k.i(f"v_xor_b32 v{vT1w}, s{sT1}, v{vT1[0]}")
    k.i(f"v_mov_b32 v{vCS}, 0"); k.i(f"v_mov_b32 v{vOnes}, 0x3f803f80")

    accQ, accH = 32, 160
    WF, NWF = 192, 16
    mf = []; frags = []; first = set()
    for s in range(10):
        for ks in range(2):
            for n in range(12):
                fi = len(frags); frags.append((len(mf), s, ks, n))
                for qt in range(4):
                    d = accQ + (qt*8 + n)*4 if n < 8 else accH + (qt*4 + n - 8)*4
                    c = vr(d) if d in first else "0"; first.add(d)
                    mf.append(f"{MF16} {vr(d)}, {ar(WF + 4*(fi % NWF))}, {ar(XF(s, ks, qt))}, {c}")
    fill = []
    LEAD, BL = 24, 14
    bpos = {s: 96*s - BL for s in range(1, 10)}; bpos[0] = -100; bpos[10] = 10**6
    prev = -1000
    for fi, (use, s, ks, n) in enumerate(frags):
        p = max(use - LEAD, bpos[s] + 0.5)
        p = min(p, bpos[s+1] - 8)
        p = max(p, prev + 0.5); prev = p
        if fi >= NWF: assert p >= frags[fi - NWF][0] + 3.1, (fi, p)
        dl = min(use - 8, bpos[s+1] - 5)
        r = WF + 4*(fi % NWF)
        if n < 8: base, off, st2 = vTR[n], WQS[s % 3] + ks*8192, 1024
        else: base, off, st2 = vT1[n-8], (s % 3)*8192 + ks*4096, 512
        fill.append((p, f"ds_read_b64_tr_b16 {ar(r, 2)}, v{base} offset:{off}", dl))
        fill.append((p + 0.25, f"ds_read_b64_tr_b16 {ar(r+2, 2)}, v{base} offset:{off + st2}", dl))
    for s in range(10):
        for ks in range(2):
            p = 96*s + 48*ks + 2; r = 224 + 4*ks
            off = (s % 3)*8192 + ks*4096
            fill.append((p, f"ds_read_b64_tr_b16 {vr(r, 2)}, v{vT1w} offset:{off}", p + 20))
            fill.append((p + 0.3, f"ds_read_b64_tr_b16 {vr(r+2, 2)}, v{vT1w} offset:{off + 512}", p + 20))
            for j in range(4): fill.append((p + 26 + 4*j, f"v_dot2c_f32_bf16 v{vCS}, v{r+j}, v{vOnes}"))
    def barrier(tags):
        def f():
            for t in tags: k.wait_tag(t)
            k.i("s_waitcnt lgkmcnt(0)"); k.i("s_barrier")
        return f
    for s in range(1, 10): fill.append((bpos[s], barrier([f"st{s}"]), bpos[s]))
    for s in range(8):
        a = max(bpos[s] + 3, 0)
        fill += spread(dma_stage(s + 2), a, a + 30)
        fill += spread(x_loads(s + 2, 0), 96*s + 48, 96*s + 66)
        fill += spread(x_loads(s + 2, 1), 96*s + 96 + 18, 96*s + 96 + 36)
    fill += spread(dma_tile_const(KSL(0), 0, "kv") + dma_tile_const(KSL(1), 32768, "kv") + dma_tile_const(VSL(0), 16384, "kv"), 96*8 + 40, 96*9 + 40)
    fill += spread([f"v_accvgpr_write_b32 a{j}, 0" for j in range(128)], 10, 900)
    vST = 232
    vB1 = 240
    ld = []
    ld += [f"v_and_b32 v{t1}, 15, v0", f"v_lshlrev_b32 v{t1}, 3, v{t1}", f"v_lshrrev_b32 v{t2}, 4, v0", f"v_lshlrev_b32 v{t2}, 3, v{t2}"]
    for half, sq in enumerate((sQ0, sQ1)):
        ld += [f"s_lshl_b32 s{sT2}, s{sq}, 8", f"s_add_u32 s{sT2}, s{sT2}, {WS_ST}"]
        ld += [f"buffer_load_dwordx2 {vr(vST + 4*half + 2*e, 2)}, v{t1}, {srd(S_WS)}, s{sT2} offen offset:{e*128}" for e in range(2)]
    ld += [f"s_lshl_b32 s{sT2}, s{sHc}, 7"]
    ld += [f"buffer_load_dwordx2 {vr(vB1 + 2*ft, 2)}, v{t2}, {srd(S_B1)}, s{sT2} offen offset:{ft*32}" for ft in range(4)]
    fill += spread(ld, 96*9 + 44, 96*9 + 80)
    stamp(k, 1)
    k.wait_tag("st0"); k.i("s_barrier")
    stamp(k, 2)
    print("P over", weave(k, mf, fill))
    stamp(k, 3)
    k.i(f"v_mov_b32 v{t3}, v{vCS}"); k.i(f"v_permlane16_swap_b32 v{vCS}, v{t3}"); k.i(f"v_add_f32 v{vCS}, v{vCS}, v{t3}")
    k.i(f"v_mov_b32 v{t3}, v{vCS}"); k.i(f"v_permlane32_swap_b32 v{vCS}, v{t3}"); k.i(f"v_add_f32 v{vCS}, v{vCS}, v{t3}")
    k.i(f"v_and_b32 v{t1}, 15, v0"); k.i(f"v_lshlrev_b32 v{t1}, 2, v{t1}"); k.i(f"s_lshl_b32 s{sT1}, s{sW}, 6"); k.i(f"s_add_u32 s{sT1}, s{sT1}, {SCR}")
    k.i(f"v_add_u32 v{t1}, s{sT1}, v{t1}")
    k.i(f"ds_write_b32 v{t1}, v{vCS}")
    for j in range(64): k.i(f"v_cvt_pk_bf16_f32 v{accQ+j}, v{accQ+2*j}, v{accQ+2*j+1}")
    for qb in range(2):
        for j in range(16): k.i(f"v_permlane16_swap_b32 v{accQ + qb*32 + j}, v{accQ + qb*32 + 16 + j}")
    k.i("s_waitcnt vmcnt(0) lgkmcnt(0)"); k.i("s_barrier")
    stamp(k, 4)
    skipH = k.newlab()
    k.i(f"s_cmp_gt_u32 s{sH}, 26"); k.i(f"s_cbranch_scc1 {skipH}")
    CS = 96; BB = 112; TT = 128
    k.i(f"v_lshrrev_b32 v{t1}, 4, v0"); k.i(f"v_lshlrev_b32 v{t1}, 4, v{t1}"); k.i(f"v_add_u32 v{t1}, {SCR}, v{t1}")
    for ft in range(4): k.i(f"ds_read_b128 {vr(CS + 4*ft)}, v{t1} offset:{ft*64}")
    for j in range(8):
        k.i(f"v_lshlrev_b32 v{BB+2*j}, 16, v{vB1+j}"); k.i(f"v_and_b32 v{BB+2*j+1}, 0xffff0000, v{vB1+j}")
    for qt in range(4): k.i(f"v_mul_f32 v{vST+2*qt+1}, -v{vST+2*qt}, v{vST+2*qt+1}")
    a0 = -2*math.log2(math.e)*math.sqrt(2/math.pi); a1 = a0*0.044715
    k.i(f"s_mov_b32 s{sA}, {f32(a1)}"); k.i(f"s_mov_b32 s{sB}, {f32(a1)}")
    k.i(f"v_mov_b32 v{TT+16}, {f32(a0)}"); k.i(f"v_mov_b32 v{TT+17}, {f32(a0)}")
    for qt in range(4):
        st = vr(vST + 2*qt, 2)
        for u in range(2):
            base = accH + (qt*4 + 2*u)*4
            for j in range(4):
                a = vr(base + 2*j, 2); T = vr(TT + 2*j, 2)
                k.i(f"v_pk_fma_f32 {T}, {vr(CS + 8*u + 2*j, 2)}, {st}, {vr(BB + 8*u + 2*j, 2)} op_sel:[0,1,0] op_sel_hi:[1,1,1]")
            for j in range(4):
                a = vr(base + 2*j, 2); T = vr(TT + 2*j, 2)
                k.i(f"v_pk_fma_f32 {a}, {a}, {st}, {T} op_sel:[0,0,0] op_sel_hi:[1,0,1]")
            for j in range(4):
                a = vr(base + 2*j, 2); T = vr(TT + 2*j, 2)
                k.i(f"v_pk_mul_f32 {T}, {a}, {a}")
            for j in range(4):
                T = vr(TT + 2*j, 2)
                k.i(f"v_pk_fma_f32 {T}, {T}, s[{sA}:{sB}], {vr(TT+16, 2)}")
            for j in range(4):
                a = vr(base + 2*j, 2); T = vr(TT + 2*j, 2)
                k.i(f"v_pk_mul_f32 {T}, {T}, {a}")
            for j in range(8): k.i(f"v_exp_f32 v{TT+j}, v{TT+j}")
            for j in range(4):
                T = vr(TT + 2*j, 2)
                k.i(f"v_pk_add_f32 {T}, {T}, 1.0 op_sel_hi:[1,0]")
            for j in range(8): k.i(f"v_rcp_f32 v{TT+j}, v{TT+j}")
            for j in range(4):
                a = vr(base + 2*j, 2); T = vr(TT + 2*j, 2)
                k.i(f"v_pk_mul_f32 {a}, {a}, {T}")
            for j in range(4): k.i(f"v_cvt_pk_bf16_f32 v{base+j}, v{base+2*j}, v{base+2*j+1}")
            if u == 0:
                sq = sQ0 if qt < 2 else sQ1
                k.i(f"s_lshl_b32 s{sT1}, s{sq}, 1"); k.i(f"s_add_u32 s{sT1}, s{sT1}, {qt & 1}"); k.i(f"s_mul_i32 s{sT1}, s{sT1}, {NKS3*1024}")
                k.i(f"s_lshl_b32 s{sT2}, s{sHc}, 11"); k.i(f"s_add_u32 s{sT1}, s{sT1}, s{sT2}"); k.i(f"s_add_u32 s{sT1}, s{sT1}, {WS_A3 + 128*1024}")
            k.i(f"buffer_store_dwordx4 {vr(base)}, v{vL16}, {srd(S_WS)}, s{sT1} offen offset:{u*1024} {store_flags}")
    k.i("s_nop 1")
    k.lab(skipH)
    k.lq = []; k.vq = []
    stamp(k, 5)

    Qf = lambda qb, sp: 32 + (2*qb + (sp & 1))*16 + 4*(sp >> 1)
    Sb = [96, 128]; Pb = [160, 176]; Mb = 192
    E = 224; LA = [228, 229]; LB = [230, 231]; X0, X1, X2, X3 = 232, 233, 234, 235; DM = 240
    O = lambda qb, db: (qb*4 + db)*16
    FR = lambda n: 128 + 4*(n % 16)
    F = 6
    GB = 54
    stubs = []

    k.i(f"v_and_b32 v{t1}, 31, v0"); k.i(f"v_lshrrev_b32 v{t2}, 5, v0"); k.i(f"v_lshlrev_b32 v{t2}, 2, v{t2}"); k.i(f"v_sub_u32 v{t1}, v{t1}, v{t2}")
    for r in range(16):
        k.i(f"v_cmp_gt_i32 s[{52 + 2*(r & 3)}:{53 + 2*(r & 3)}], {8*(r >> 2) + (r & 3)}, v{t1}")
        if r & 3 == 3:
            for q in range(4): k.i(f"v_cndmask_b32 v{DM + r - 3 + q}, 0, 1.0, s[{52 + 2*q}:{53 + 2*q}]")

    def softmax_ops(sb, pb, mode, lin, lout, first_l=False):
        ops = []; pend = None; started = set()
        for z in range(2):
            qb = z if mode == "D" else 1
            for jj in range(8):
                e = E + 2*((z*8 + jj) & 1)
                ops.append(f"v_exp_f32 v{e}, v{Sb[sb] + 16*z + 2*jj}")
                ops.append(f"v_exp_f32 v{e+1}, v{Sb[sb] + 16*z + 2*jj + 1}")
                if pend: ops += pend
                if qb not in started:
                    started.add(qb)
                    a = [f"v_add_f32 v{lout[qb]}, v{e}, v{e+1}"] if first_l else [f"v_add_f32 v{lout[qb]}, v{lin[qb]}, v{e}", f"v_add_f32 v{lout[qb]}, v{lout[qb]}, v{e+1}"]
                else:
                    a = [f"v_add_f32 v{lout[qb]}, v{lout[qb]}, v{e}", f"v_add_f32 v{lout[qb]}, v{lout[qb]}, v{e+1}"]
                pend = [a[0], f"v_cvt_pk_bf16_f32 v{Pb[pb] + 8*z + jj}, v{e}, v{e+1}"] + a[1:]
        return ops + pend
    def spread_cost(items, a, b):
        tot = sum(Ins(x).cost for x in items); acc = 0; out = []
        for x in items:
            out.append((a + (b - a)*acc/tot, x, b)); acc += Ins(x).cost
        return out
    def mask_code(sb, mode, kvadd):
        L = []
        for z in ((0,) if mode == "D" else (0, 1)):
            sq = sQ0 if mode == "D" else sQ1
            L += [f"s_lshl_b32 s{sKv}, s{sT}, 1", f"s_add_u32 s{sKv}, s{sKv}, {kvadd + z}",
                  f"s_cmp_eq_u32 s{sKv}, s{sq}", f"s_cselect_b32 s{sA}, s{sNB}, 0",
                  f"s_cmp_gt_u32 s{sKv}, s{sq}", f"s_cselect_b32 s{sB}, s{sNB}, 0"]
            for r in range(16): L.append(f"v_fma_f32 v{Sb[sb] + 16*z + r}, v{DM + r}, s{sA}, v{Sb[sb] + 16*z + r}")
            for r in range(16): L.append(f"v_add_f32 v{Sb[sb] + 16*z + r}, s{sB}, v{Sb[sb] + 16*z + r}")
        return L
    def mask_site(sb, mode, kvadd):
        def f():
            lo, back = k.newlab("M"), k.newlab("MB")
            last = kvadd + (0 if mode == "D" else 1)
            k.i(f"s_lshl_b32 s{sKv}, s{sT}, 1"); k.i(f"s_add_u32 s{sKv}, s{sKv}, {last}")
            k.i(f"s_cmp_ge_u32 s{sKv}, s{sQ0 if mode == 'D' else sQ1}")
            k.i(f"s_cbranch_scc1 {lo}")
            k.lab(back)
            stubs.append((lo, ["s_nop 7"] + mask_code(sb, mode, kvadd) + ["s_nop 1", f"s_branch {back}"]))
        return f
    slow_used = set()
    def check_site(par, mn, mn1):
        def f():
            lo, back = k.newlab("C"), k.newlab("CB")
            lout = LB if par == 0 else LA
            if mn == "D":
                k.i(f"v_max_f32 v{X0}, v{lout[0]}, v{lout[1]}"); k.i(f"v_cmp_lt_f32 vcc, s{sThr}, v{X0}")
            else:
                k.i(f"v_cmp_lt_f32 vcc, s{sThr}, v{lout[1]}")
            k.i(f"s_cbranch_vccnz {lo}")
            k.lab(back)
            slow_used.add((par, mn, mn1))
            stubs.append((lo, [f"s_call_b64 s[{sRet}:{sRet+1}], L_slow_{par}{mn}{mn1}", f"s_branch {back}"]))
        return f
    def rowmax(dst, regs):
        L = [f"v_max3_f32 v{dst}, v{regs[0]}, v{regs[1]}, v{regs[2]}"]
        rest = regs[3:]
        while len(rest) >= 2:
            L.append(f"v_max3_f32 v{dst}, v{dst}, v{rest[0]}, v{rest[1]}"); rest = rest[2:]
        if rest: L.append(f"v_max_f32 v{dst}, v{dst}, v{rest[0]}")
        L += [f"v_mov_b32 v{X3}, v{dst}", f"v_permlane32_swap_b32 v{dst}, v{X3}", f"v_max_f32 v{dst}, v{dst}, v{X3}"]
        return L
    def qk(sb, mode, f0, cinit=True):
        M = []; U = []
        if mode == "D":
            for sp in range(8):
                U.append(len(M))
                for qb in range(2):
                    d = vr(Sb[sb] + 16*qb, 16); c = d if sp else (vr(Mb + 16*qb, 16) if cinit else "0")
                    M.append(f"{MF32} {d}, {ar(FR(f0 + sp))}, {vr(Qf(qb, sp))}, {c}")
        else:
            for z in range(2):
                for sp in range(8):
                    U.append(len(M))
                    d = vr(Sb[sb] + 16*z, 16); c = d if sp else vr(Mb + 16, 16)
                    M.append(f"{MF32} {d}, {ar(FR(f0 + 8*z + sp))}, {vr(Qf(1, sp))}, {c}")
        return M, U
    def pv(pb, mode, f0):
        M = []; U = []
        if mode == "D":
            for n in range(8):
                U.append(len(M))
                for qb in range(2):
                    o = ar(O(qb, n & 3), 16)
                    M.append(f"{MF32} {o}, {ar(FR(f0 + n))}, {vr(Pb[pb] + 8*qb + 4*(n >> 2))}, {o}")
        else:
            for n in range(16):
                U.append(len(M))
                o = ar(O(1, n & 3), 16)
                M.append(f"{MF32} {o}, {ar(FR(f0 + n))}, {vr(Pb[pb] + 4*(n >> 2))}, {o}")
        return M, U
    def dma_tile(kind, dt, oob=False):
        L = [f"s_add_u32 s{sT1}, s{sT}, {dt}", f"s_lshl_b32 s{sT0}, s{sT1}, 15", f"s_add_u32 s{sT0}, s{sT0}, s{sHb}"]
        if kind == "V": L += [f"s_add_u32 s{sT0}, s{sT0}, 16384", f"s_not_b32 s{sT1}, s{sT1}"]
        if oob: L += [lambda: k.many([f"s_cmp_lt_u32 s{sT}, s{sEnd}", f"s_cselect_b32 s{sT0}, s{sT0}, {WS_SIZE}"])]
        L += [f"s_and_b32 s{sT1}, s{sT1}, 3", f"s_lshl_b32 s{sT1}, s{sT1}, 14", f"s_add_u32 s{sT1}, s{sT1}, s{sLW}"]
        L += [f"s_add_u32 m0, s{sT1}, {65536 if kind == 'K' else 0}"]
        L += [(f"buffer_load_dwordx4 v{vL16}, {srd(S_WS)}, s{sT0} offen offset:{u*1024} lds", "kv") for u in range(4)]
        return L
    def set_vk(dt):
        return [f"s_add_u32 s{sT2}, s{sT}, {dt}", f"s_and_b32 s{sT2}, s{sT2}, 3", f"s_lshl_b32 s{sT2}, s{sT2}, 14", f"s_add_u32 s{sT2}, s{sT2}, 65536",
                f"v_add_u32 v{vK}, s{sT2}, v{vL16}"]
    def set_vv(dt):
        return [f"s_sub_u32 s{sT2}, {(3 - dt) & 0xff}, s{sT}", f"s_and_b32 s{sT2}, s{sT2}, 3", f"s_lshl_b32 s{sT2}, s{sT2}, 14",
                f"v_add_u32 v{vV}, s{sT2}, v{vL16}"]
    PRE = [tuple(f"a{FR(n)+j}" for j in range(4)) for n in range(F)]
    def entry_state():
        k.set_q(([tuple(sorted(x)) for x in PRE], []))
    def place_reads(fill, reads, lead, gb, nM):
        prev = -1000
        for n, (use, text, kind) in enumerate(reads):
            if text is None: continue
            p = use - lead
            if kind == "next": p = max(p, gb + 0.3)
            else: p = min(p, gb - 4)
            if kind.startswith("after"): p = max(p, float(kind[5:]) + 0.3)
            if n >= 16: p = max(p, reads[n - 16][3 if False else 0] + reads_span[0] + 0.05)
            p = max(p, prev + 0.34, 0.1); prev = p
            dl = min(use - 3, (gb - 3) if kind != "next" else nM - 1)
            assert p <= dl + 0.99, (n, p, dl, text)
            fill.append((p, text, dl))
    reads_span = [1]

    def iteration(qm, pm, sma, smb, step, first_extra=None):
        entry_state()
        M = []; reads = []; fill = []
        nk = 8 if qm == "D" else 16; nv = 8 if pm == "D" else 16
        for sl in range(2):
            m, U = qk(sl, qm, len(reads))
            for n, u in enumerate(U):
                off = (sl*nk + n)*1024
                kind = "cur" if not (first_extra and sl == 1) else f"after{first_extra}"
                reads.append((len(M) + u, None if len(reads) < F else f"ds_read_b128 {ar(FR(len(reads)))}, v{vK} offset:{off}", kind))
            M += m
            m, U = pv(sl, pm, len(reads))
            for n, u in enumerate(U):
                off = (sl*8 + n)*1024 if pm == "D" else ((1 - sl)*16 + n)*1024
                reads.append((len(M) + u, f"ds_read_b128 {ar(FR(len(reads)))}, v{vV} offset:{off}", "cur"))
            M += m
        assert len(reads) % 16 == 0
        for n in range(F): reads.append((64 + n, f"ds_read_b128 {ar(FR(n))}, v{vK} offset:{n*1024}", "next"))
        fill += [(-1, x) for x in []]
        fill += spread(set_vv(-1), 0, 3)
        place_reads(fill, reads, 9, GB, 64)
        fill += spread_cost(softmax_ops(1, 1, sma, LA, LB), 0, 30.5)
        fill.append((31.5, check_site(0, sma, qm), 31))
        fill += spread_cost(softmax_ops(0, 0, smb, LB, LA), 32, 62.5)
        fill.append((63.5, check_site(1, smb, qm), 63))
        fill.append((19, mask_site(0, qm, 0), 24))
        fill.append((51, mask_site(1, qm, 1 if qm == "D" else 2), 53))
        if qm == "D":
            fill += spread(dma_tile("K", 2) + dma_tile("V", 1), 4, 44)
            nv_out = 8
        else:
            fill += spread(dma_tile("V", 0) + dma_tile("V", 1) + dma_tile("K", 2, True) + dma_tile("K", 3, True), 1, 30)
            nv_out = 0
        if first_extra:
            def xb():
                n = sum(1 for x in k.vq)
                k.i(f"s_waitcnt vmcnt({n + 4})"); k.i("s_barrier")
            fill.append((first_extra, xb, first_extra))
        def bar():
            k.i(f"s_waitcnt vmcnt({nv_out}) lgkmcnt(0)"); k.i("s_barrier")
        fill += spread(set_vk(step), GB - 3.5, GB - 0.5)
        fill.append((GB, bar, GB))
        fill.append((GB + 2, f"s_add_u32 s{sT}, s{sT}, {step}"))
        def drop(it):
            t = it[1][0] if isinstance(it[1], tuple) else it[1]
            if callable(t):
                return ("nobar" in dbg and t.__name__ in ("bar", "xb")) or ("nosite" in dbg and t.__name__ == "f")
            if "nodma" in dbg and " lds" in t: return True
            if "nolds" in dbg and t.startswith("ds_read"): return True
            if "nosm" in dbg and t.startswith(("v_exp", "v_add_f32", "v_cvt")): return True
            if "nosalu" in dbg and t.startswith("s_") and f"s{sT}, s{sT}," not in t: return True
            return False
        fill = [it for it in fill if not drop(it)]
        ov = weave(k, M, fill)
        assert [x for x in k.qstate()[0]] == [tuple(sorted(x)) for x in PRE][-len(k.qstate()[0]):] or True
        return ov

    k.i(f"s_mov_b32 s{sT}, 0")
    k.many(set_vk(0))
    M = []; reads = []; fill = []
    for sl in range(2):
        m, U = qk(sl, "D", len(reads), cinit=False)
        for n, u in enumerate(U): reads.append((len(M) + u, f"ds_read_b128 {ar(FR(len(reads)))}, v{vK} offset:{(sl*8 + n)*1024}"))
        M += m
    for n, (use, text) in enumerate(reads): fill.append((use - 10, text, use - 3))
    fill += spread(dma_tile("K", 2) + dma_tile("V", 1), 1, 15)
    fill.append((19, mask_site(0, "D", 0), 19))
    post = []
    for qb in range(2): post += rowmax(X0 + qb, [Sb[0] + 16*qb + r for r in range(16)])
    for qb in range(2):
        for r in range(16): post.append(f"v_sub_f32 v{Sb[0] + 16*qb + r}, v{Sb[0] + 16*qb + r}, v{X0 + qb}")
    for qb in range(2):
        for r in range(16): post.append(f"v_sub_f32 v{Mb + 16*qb + r}, 0, v{X0 + qb}")
    fill += [(19.5 + 0.1*n, x, 10**6) for n, x in enumerate(post)]
    weave(k, M, fill)
    mask_site(1, "D", 1)()
    k.many(set_vk(1))
    sm = softmax_ops(0, 0, "D", LB, LA, first_l=True)
    k.many(sm[:40])
    for qb in range(2):
        for r in range(16): k.i(f"v_sub_f32 v{Sb[1] + 16*qb + r}, v{Sb[1] + 16*qb + r}, v{X0 + qb}")
    for n in range(F): k.i(f"ds_read_b128 {ar(FR(n))}, v{vK} offset:{n*1024}")
    k.many(sm[40:])
    k.i(f"s_mov_b32 s{sT}, 1")
    k.i(f"s_lshl_b32 s{sRa}, s{sI}, 1"); k.i(f"s_add_u32 s{sRa}, s{sRa}, 2")
    stamp(k, 6)
    k.lab("L_dual")
    print("D over", iteration("D", "D", "D", "D", 1))
    k.i(f"s_cmp_lt_u32 s{sT}, s{sRa}"); k.i("s_cbranch_scc1 L_dual")
    stamp(k, 7)
    print("X over", iteration("S", "D", "D", "S", 2, first_extra=20))
    k.i(f"s_cmp_gt_u32 s{sT}, s{sEnd}"); k.i("s_cbranch_scc1 L_drain")
    k.lab("L_single")
    print("S over", iteration("S", "S", "S", "S", 2))
    k.i(f"s_cmp_le_u32 s{sT}, s{sEnd}"); k.i("s_cbranch_scc1 L_single")
    k.lab("L_drain")
    stamp(k, 8)
    entry_state()
    k.many(set_vv(-1))
    M = []; reads = []; fill = []
    for sl in range(2):
        m, U = pv(sl, "S", 16*sl + 8)
        for n, u in enumerate(U): reads.append((len(M) + u, f"ds_read_b128 {ar(FR(16*sl + 8 + n))}, v{vV} offset:{((1 - sl)*16 + n)*1024}"))
        M += m
    for n, (use, text) in enumerate(reads): fill.append((max(use - 8, (reads[n-16][0] + 0.1) if n >= 16 else -100), text, use - 3))
    sm = softmax_ops(1, 1, "S", LA, LB)
    fill += [(-0.5, x) for x in sm[:12]]
    fill += spread_cost(sm[12:], 0, 14.5)
    fill.append((15.5, check_site(0, "S", "S"), 15))
    def epi(qb, T):
        L = []
        l = LB[qb]
        L += [f"v_mov_b32 v{X3}, v{l}", f"v_permlane32_swap_b32 v{l}, v{X3}", f"v_add_f32 v{l}, v{l}, v{X3}", f"v_rcp_f32 v{X0 + 2*0}, v{l}"]
        sq = sQ0 if qb == 0 else sQ1
        L += [f"s_mul_i32 s{sT1}, s{sq}, {2*NKS3*1024}", f"s_lshl_b32 s{sT2}, s{sH}, 12", f"s_add_u32 s{sT1}, s{sT1}, s{sT2}", f"s_add_u32 s{sT1}, s{sT1}, {WS_A3}"]
        for db in range(4):
            B = T + 16*(db & 1)
            for r in range(16): L.append(f"v_accvgpr_read_b32 v{B + r}, a{O(qb, db) + r}")
            for r in range(8): L.append(f"v_pk_mul_f32 {vr(B + 2*r, 2)}, {vr(B + 2*r, 2)}, {vr(X0, 2)} op_sel_hi:[1,0]")
            for t in range(2):
                for j in range(4): L.append(f"v_cvt_pk_bf16_f32 v{B + 8*t + j}, v{B + 8*t + 2*j}, v{B + 8*t + 2*j + 1}")
                L.append(f"buffer_store_dwordx4 {vr(B + 8*t)}, v{vCS}, {srd(S_WS)}, s{sT1} offen offset:{db*1024 + t*512} {store_flags}")
        return L
    pre = [f"v_bfe_u32 v{t1}, v0, 4, 1", f"v_mul_u32_u24 v{t1}, {NKS3*1024}, v{t1}", f"v_and_b32 v{t2}, 15, v0", f"v_lshl_add_u32 v{t1}, v{t2}, 4, v{t1}",
           f"v_lshrrev_b32 v{t2}, 5, v0", f"v_lshl_add_u32 v{vCS}, v{t2}, 8, v{t1}"]
    fill += [(16 + 0.09*n, x, 10**6) for n, x in enumerate(pre + epi(0, 96))]
    weave(k, M, fill)
    stamp(k, 9)
    k.many(epi(1, 128))
    stamp(k, 10)
    if gen.STAMP: k.i("s_waitcnt vmcnt(0)")
    stamp(k, 11)
    stamp_flush(k, 12, S_WS, sW, 1)
    k.lab("L_k2_end")
    k.i("s_endpgm")
    for lab, code in stubs:
        k.hist = []; k.lq = []; k.vq = []
        k.lab(lab); k.many(code)
    for (par, mn, mn1) in sorted(slow_used):
        k.hist = []; k.lq = []; k.vq = []
        k.lab(f"L_slow_{par}{mn}{mn1}")
        sb = 1 - par; so = par; pb = 1 - par
        lin, lout = (LA, LB) if par == 0 else (LB, LA)
        k.i("s_nop 15")
        qbs = (0, 1) if mn == "D" else (1,)
        for qb in qbs:
            regs = [Sb[sb] + 16*qb + r for r in range(16)] if mn == "D" else [Sb[sb] + r for r in range(32)]
            d = X0 + qb
            k.many(rowmax(d, regs))
            k.i(f"v_max_f32 v{d}, 0, v{d}")
            for r in regs: k.i(f"v_sub_f32 v{r}, v{r}, v{d}")
            nxt = ([Sb[so] + 16*qb + r for r in range(16)] if mn1 == "D" else ([Sb[so] + r for r in range(32)] if qb == 1 else []))
            for r in nxt: k.i(f"v_sub_f32 v{r}, v{r}, v{d}")
            for r in range(16): k.i(f"v_sub_f32 v{Mb + 16*qb + r}, v{Mb + 16*qb + r}, v{d}")
            k.i(f"v_exp_f32 v{X2}, -v{d}")
            k.i(f"v_mul_f32 v{lin[qb]}, v{lin[qb]}, v{X2}")
            for r in range(64):
                k.i(f"v_accvgpr_read_b32 v{X3}, a{O(qb, 0) + r}"); k.i(f"v_mul_f32 v{X3}, v{X3}, v{X2}"); k.i(f"v_accvgpr_write_b32 a{O(qb, 0) + r}, v{X3}")
        k.many(softmax_ops(sb, pb, mn, lin, lout))
        k.i("s_nop 3")
        k.i(f"s_setpc_b64 s[{sRet}:{sRet+1}]")
    return k

if __name__ == "__main__":
    k1 = gen_k1(); k2 = gen_k2()
    print("k2 instrs", sum(isinstance(x, Ins) for x in k2.items), "nops", k2.nnop, "waits", k2.nwait)
    write_file("k12.s", [k1, k2])
    gen.STAMP = True
    write_file("k12s.s", [gen_k1(), gen_k2()])
    for d in sys.argv[1:]:
        write_file(f"k12s_{d}.s", [gen_k1(), gen_k2(dbg=d.split("+"))])
```

```python
from gen2 import *
WS_FLAG = 35*(1 << 20) + 65536

def gen_k3():
    k = Kern("oproj_kernel", lds=160*1024)
    S_WS, S_X, S_B2, S_OUT = 8, 12, 16, 20
    srd = lambda s: f"s[{s}:{s+3}]"
    k.i("s_cmp_ge_u32 s2, 256"); k.i("s_cbranch_scc1 L_k3_end")
    stamp(k, 0)
    load_srds(k, dict(ws=S_WS, x=S_X, b2=S_B2, out=S_OUT))
    sW, sSp, sRb, sCb, sT0, sT1, sT2, sWh, sWc, sAh, sAc, sA0, sLW, sTile, sCnt = range(24, 39)
    k.i("v_lshrrev_b32 v1, 6, v0"); k.i(f"v_readfirstlane_b32 s{sW}, v1")
    k.i("v_and_b32 v0, 63, v0")
    k.i(f"s_bfe_u32 s{sSp}, s2, 0x20001")
    k.i(f"s_and_b32 s{sT0}, s2, 1"); k.i(f"s_lshl_b32 s{sT0}, s{sT0}, 3"); k.i(f"s_lshr_b32 s{sRb}, s2, 5"); k.i(f"s_add_u32 s{sRb}, s{sRb}, s{sT0}")
    k.i(f"s_bfe_u32 s{sCb}, s2, 0x20003")
    k.i(f"s_lshl_b32 s{sTile}, s{sRb}, 2"); k.i(f"s_add_u32 s{sTile}, s{sTile}, s{sCb}")
    k.i(f"s_mul_i32 s{sT0}, s{sSp}, 13"); k.i(f"s_min_u32 s{sT1}, s{sSp}, 1"); k.i(f"s_add_u32 s{sT0}, s{sT0}, s{sT1}"); k.i(f"s_add_u32 s{sT0}, s{sT0}, 128")
    k.i(f"s_lshl_b32 s{sT1}, s{sSp}, 5")
    k.i(f"s_mul_i32 s{sT2}, s{sCb}, {NKS3}")
    k.i(f"s_mul_i32 s{sLW}, s{sW}, 5120")
    for dst, st in ((sWh, sT0), (sWc, sT1)):
        k.i(f"s_add_u32 s{dst}, s{sT2}, s{st}"); k.i(f"s_mul_i32 s{dst}, s{dst}, 10240"); k.i(f"s_add_u32 s{dst}, s{dst}, s{sLW}"); k.i(f"s_add_u32 s{dst}, s{dst}, {WS_W3}")
    k.i(f"s_lshl_b32 s{sT2}, s{sRb}, 3"); k.i(f"s_lshl_b32 s{sA0}, s{sW}, 1"); k.i(f"s_add_u32 s{sT2}, s{sT2}, s{sA0}"); k.i(f"s_mul_i32 s{sT2}, s{sT2}, {NKS3}")
    for dst, st in ((sAh, sT0), (sAc, sT1)):
        k.i(f"s_add_u32 s{dst}, s{sT2}, s{st}"); k.i(f"s_lshl_b32 s{dst}, s{dst}, 10"); k.i(f"s_add_u32 s{dst}, s{dst}, {WS_A3}")
    k.i(f"s_cmp_lt_u32 s{sSp}, 2"); k.i(f"s_cselect_b32 s{sA0}, s{sAh}, {WS_SIZE}")
    vL16, vA = 2, [3, 4]; vR = [[5, 6, 7], [8, 9, 10]]; t0, t1, t2 = 11, 12, 13; vXo, vBo = 14, 15; vP = 16
    k.i(f"v_lshlrev_b32 v{vL16}, 4, v0")
    k.i(f"s_lshr_b32 s{sT0}, s{sSp}, 1"); k.i(f"s_mul_i32 s{sT0}, s{sT0}, {NKS3*1024}"); k.i(f"s_sub_u32 s{sT1}, {NKS3*1024}, s{sT0}")
    k.i(f"v_add_u32 v{vA[0]}, s{sT0}, v{vL16}"); k.i(f"v_add_u32 v{vA[1]}, s{sT1}, v{vL16}")
    NST = 23; RING = 8; SLOT = 20480
    def gstep(st): return (sWh, sAh, st) if st < 7 else (sWc, sAc, st - 7)
    def dma(st):
        sw, _, n = gstep(st); tag = f"st{st}"
        L = [f"s_add_u32 m0, s{sLW}, {(st % RING)*SLOT}", f"s_add_u32 s{sT0}, s{sw}, {n*SLOT}"]
        L += [(f"buffer_load_dwordx4 v{vL16}, {srd(S_WS)}, s{sT0} offen offset:{u*1024} lds", tag) for u in range(4)]
        L += [f"s_add_u32 m0, s{sLW}, {(st % RING)*SLOT + 4096}", f"s_add_u32 s{sT0}, s{sw}, {n*SLOT + 4096}"]
        L += [(f"buffer_load_dwordx4 v{vL16}, {srd(S_WS)}, s{sT0} offen lds", tag)]
        return L
    AD = 5
    AF = lambda st, ks, e: 128 + (((st % AD)*2 + ks)*2 + e)*4
    def aloads(st):
        _, sa, n = gstep(st)
        L = [f"s_add_u32 s{sT1}, s{sa}, {n*2048}"]
        for ks in range(2):
            for e in range(2):
                so = sA0 if (st == 0 and ks == 0) else sT1
                L.append(f"buffer_load_dwordx4 {ar(AF(st, ks, e))}, v{vA[e]}, {srd(S_WS)}, s{so} offen offset:{ks*1024}")
        return L
    for st in range(6):
        k.many(dma(st))
        if st < AD - 1: k.many(aloads(st))
    k.i(f"s_and_b32 s{sT0}, s{sSp}, 1"); k.i(f"s_mul_i32 s{sT0}, s{sT0}, 5120")
    k.i(f"v_add_u32 v{vR[0][0]}, s{sT0}, v{vL16}"); k.i(f"v_subrev_u32 v{vR[1][0]}, s{sT0}, v{vL16}"); k.i(f"v_add_u32 v{vR[1][0]}, 5120, v{vR[1][0]}")
    for hf in range(2):
        for wdw in (1, 2): k.i(f"v_add_u32 v{vR[hf][wdw]}, {wdw*3*SLOT}, v{vR[hf][0]}")
    acc = 32; WF, NWF = 0, 16
    mf = []; frags = []; first = set()
    for st in range(NST):
        for ks in range(2):
            for nt in range(10):
                fi = len(frags); frags.append((len(mf), st, ks, nt))
                for e in range(2):
                    d = acc + (e*10 + nt)*4
                    c = vr(d) if d in first else "0"; first.add(d)
                    mf.append(f"{MF16} {vr(d)}, {ar(WF + 4*(fi % NWF))}, {ar(AF(st, ks, e))}, {c}")
    fill = []
    LEAD, BL = 22, 12
    bp = lambda st: -100 if st < 2 else 40*(st & ~1) - BL
    prev = -1000
    for fi, (use, st, ks, nt) in enumerate(frags):
        nb = bp(st + 2) if (st & ~1) + 2 < NST else 10**6
        p = max(use - LEAD, bp(st) + 0.5); p = min(p, nb - 8); p = max(p, prev + 0.5); prev = p
        if fi >= NWF: assert p >= frags[fi - NWF][0] + 1.05, (fi, p)
        slot = st % RING; wdw = slot // 3
        off = (slot - 3*wdw)*SLOT + ks*10240 + (nt % 5)*1024
        fill.append((p, f"ds_read_b128 {ar(WF + 4*(fi % NWF))}, v{vR[nt // 5][wdw]} offset:{off}", min(use - 7, nb - 5)))
    def barrier(tags):
        def f():
            for t in tags: k.wait_tag(t)
            k.i("s_waitcnt lgkmcnt(0)"); k.i("s_barrier")
        return f
    for st in range(2, NST, 2): fill.append((bp(st), barrier([f"st{st}", f"st{st+1}"]), bp(st)))
    for st in range(0, NST, 2):
        a = max(bp(st) + 2, 0)
        L = sum((dma(x) for x in (st + 6, st + 7) if x < NST), [])
        if L: fill += spread(L, a, a + 70)
    for st in range(NST):
        if st + AD - 1 < NST: fill += spread(aloads(st + AD - 1), 40*st + 1.5, 40*st + 30)
    XR, BR = 112, 122
    ld = [f"v_and_b32 v{t0}, 15, v0", f"v_mul_u32_u24 v{t0}, 1280, v{t0}", f"v_lshrrev_b32 v{t1}, 4, v0", f"v_lshlrev_b32 v{vBo}, 3, v{t1}", f"v_add_u32 v{vXo}, v{t0}, v{vBo}",
          f"s_lshl_b32 s{sT2}, s{sRb}, 3", f"s_lshl_b32 s{sCnt}, s{sW}, 1", f"s_add_u32 s{sT2}, s{sT2}, s{sCnt}", f"s_lshr_b32 s{sCnt}, s{sSp}, 1", f"s_add_u32 s{sT2}, s{sT2}, s{sCnt}",
          f"s_mul_i32 s{sA0}, s{sT2}, {16*1280}",
          f"s_lshl_b32 s{sT2}, s{sCb}, 1", f"s_and_b32 s{sCnt}, s{sSp}, 1", f"s_add_u32 s{sT2}, s{sT2}, s{sCnt}", f"s_mul_i32 s{sT2}, s{sT2}, 160",
          f"s_add_u32 s{sA0}, s{sA0}, s{sT2}"]
    ld += [f"buffer_load_dwordx2 {vr(XR + 2*j, 2)}, v{vXo}, {srd(S_X)}, s{sA0} offen offset:{j*32}" for j in range(5)]
    ld += [f"buffer_load_dwordx2 {vr(BR + 2*j, 2)}, v{vBo}, {srd(S_B2)}, s{sT2} offen offset:{j*32}" for j in range(5)]
    fill += spread(ld, 40*20, 40*22)
    stamp(k, 1)
    k.wait_tag("st1"); k.i("s_barrier")
    stamp(k, 2)
    print("K3 over", weave(k, mf, fill))
    stamp(k, 3)
    for g in range(1, 4):
        k.i(f"s_xor_b32 s{sT0}, s{sSp}, {g}"); k.i(f"s_lshl_b32 s{sT1}, s{sTile}, 2"); k.i(f"s_add_u32 s{sT0}, s{sT0}, s{sT1}")
        k.i(f"s_mul_i32 s{sT0}, s{sT0}, {3*20480}"); k.i(f"s_add_u32 s{sT0}, s{sT0}, s{sLW}"); k.i(f"s_add_u32 s{sT0}, s{sT0}, {WS_PART + (g-1)*20480}")
        k.i(f"s_add_u32 s{sT1}, s{sT0}, 4096")
        for j in range(5):
            k.i(f"buffer_store_dwordx4 {vr(acc + (5*g + j)*4)}, v{vL16}, {srd(S_WS)}, s{sT0 if j < 4 else sT1} offen offset:{(j & 3)*1024 if j < 4 else 0} sc1")
    for j in range(5):
        for e in range(2):
            for src in (XR, BR):
                k.i(f"v_lshlrev_b32 v{t0}, 16, v{src + 2*j + e}"); k.i(f"v_and_b32 v{t1}, 0xffff0000, v{src + 2*j + e}")
                k.i(f"v_add_f32 v{acc + 4*j + 2*e}, v{acc + 4*j + 2*e}, v{t0}"); k.i(f"v_add_f32 v{acc + 4*j + 2*e + 1}, v{acc + 4*j + 2*e + 1}, v{t1}")
    k.i("s_waitcnt vmcnt(0)"); k.i("s_barrier")
    stamp(k, 4)
    skip = k.newlab()
    k.i(f"s_cmp_lg_u32 s{sW}, 0"); k.i(f"s_cbranch_scc1 {skip}")
    k.i(f"v_xor_b32 v{t0}, s{sSp}, v0"); k.i(f"v_lshlrev_b32 v{t0}, 7, v{t0}"); k.i(f"v_lshl_add_u32 v{t0}, v0, 2, v{t0}")
    k.i(f"v_mov_b32 v{t1}, 1")
    k.i(f"s_lshl_b32 s{sT0}, s{sTile}, 9"); k.i(f"s_add_u32 s{sT0}, s{sT0}, {WS_FLAG}")
    k.i("s_mov_b64 exec, 0xf")
    k.i(f"buffer_store_dword v{t1}, v{t0}, {srd(S_WS)}, s{sT0} offen sc1")
    k.i("s_mov_b64 exec, -1")
    k.lab(skip)
    k.vq = []
    k.i(f"s_lshl_b32 s{sT0}, s{sTile}, 2"); k.i(f"s_add_u32 s{sT0}, s{sT0}, s{sSp}")
    k.i(f"s_lshl_b32 s{sT1}, s{sT0}, 7"); k.i(f"s_add_u32 s{sT1}, s{sT1}, {WS_FLAG}")
    k.i(f"v_and_b32 v{t0}, 3, v0"); k.i(f"v_lshlrev_b32 v{t0}, 2, v{t0}")
    k.i(f"s_mov_b32 s{sCnt}, 0")
    poll, got = k.newlab(), k.newlab()
    k.lab(poll)
    k.i(f"buffer_load_dword v{t1}, v{t0}, {srd(S_WS)}, s{sT1} offen sc1")
    k.i(f"s_add_u32 s{sCnt}, s{sCnt}, 1")
    k.i(f"v_cmp_ne_u32 vcc, 1, v{t1}")
    k.i(f"s_cbranch_vccz {got}")
    k.i(f"s_cmp_lt_u32 s{sCnt}, 0x100000"); k.i(f"s_cbranch_scc1 {poll}")
    k.lab(got)
    stamp(k, 5)
    k.i(f"s_mul_i32 s{sT0}, s{sT0}, {3*20480}"); k.i(f"s_add_u32 s{sT0}, s{sT0}, s{sLW}"); k.i(f"s_add_u32 s{sT0}, s{sT0}, {WS_PART}")
    for g in range(1, 4):
        for j in range(5):
            if j in (0, 4): k.i(f"s_add_u32 s{sT1}, s{sT0}, {(g-1)*20480 + (4096 if j == 4 else 0)}")
            k.i(f"buffer_load_dwordx4 {vr(acc + (5*g + j)*4)}, v{vL16}, {srd(S_WS)}, s{sT1} offen offset:{(j & 3)*1024 if j < 4 else 0} sc1")
    for g in range(1, 4):
        for r in range(20): k.i(f"v_add_f32 v{acc + r}, v{acc + r}, v{acc + 20*g + r}")
    for j in range(5):
        k.i(f"v_cvt_pk_bf16_f32 v{acc + 4*j}, v{acc + 4*j}, v{acc + 4*j + 1}"); k.i(f"v_cvt_pk_bf16_f32 v{acc + 4*j + 1}, v{acc + 4*j + 2}, v{acc + 4*j + 3}")
        k.i(f"buffer_store_dwordx2 {vr(acc + 4*j, 2)}, v{vXo}, {srd(S_OUT)}, s{sA0} offen offset:{j*32}")
    stamp(k, 6)
    if gen.STAMP: k.i("s_waitcnt vmcnt(0)")
    stamp(k, 7)
    stamp_flush(k, 8, S_WS, sW, 2)
    k.lab("L_k3_end")
    k.i("s_endpgm")
    return k

HEADER = open("parallel_sum__compressed_kv_cla__mixer_channel_mlp__prompt.s.ref").read().split("; Override launch")[0]
if __name__ == "__main__":
    ks = [gen_k1(), gen_k2(), gen_k3()]
    write_file("all.s", ks, header=HEADER)
    gen.STAMP = True
    write_file("alls.s", [gen_k1(), gen_k2(), gen_k3()])
```
